```python
import torch

def _softmax(x, axis=-1):
    return torch.softmax(x, dim=axis)
def _gelu(x):
    return torch.nn.functional.gelu(x, approximate="tanh")
def _silu(x):
    return torch.nn.functional.silu(x)
def _sigmoid(x):
    return torch.sigmoid(x)
def _layernorm(x, axis=-1, eps=1e-5):
    m = x.mean(dim=axis, keepdim=True)
    v = x.var(dim=axis, keepdim=True, unbiased=False)
    return (x - m) / torch.sqrt(v + eps)
def _scatter_add(tgt, idx, src, axis=0):
    return tgt.clone().index_add_(axis, idx, src)
def _segment_sum(src, seg, n):
    out = torch.zeros((n,) + src.shape[1:], dtype=src.dtype)
    return out.index_add_(0, seg, src)
def _pad(x, pw):
    flat = tuple(v for pair in reversed(pw) for v in pair)
    return torch.nn.functional.pad(x, flat)

kernel_name = 'gated_mix__softmax_full_mha__dense_activation_squared_relu__prompt'

def setup_inputs():

    _w = (lambda a: (lambda t: t.to(torch.bfloat16) if t.is_floating_point() else t)(torch.as_tensor(a)))
    def _A_setup():
        B, S, D = 1, 2048, 576
        return {
            "x": _w((lambda *s: torch.randn(*s, dtype=torch.bfloat16) * 0.05)(B, S, D)),
            "wqkv": _w((lambda *s: torch.randn(*s, dtype=torch.bfloat16) * 0.8)(D, 3 * D)),
            "wo": _w((lambda *s: torch.randn(*s, dtype=torch.bfloat16) * 0.1)(D, D)),
        }
    _A_in = _A_setup()

    def _B_setup():
        B, S, D, F = 1, 2048, 576, 4608
        return {
            "x": _w((lambda *s: torch.randn(*s, dtype=torch.bfloat16) * 0.05)(B, S, D)),
            "w1": _w((lambda *s: torch.randn(*s, dtype=torch.bfloat16) * 0.05)(D, F)),
            "b1": _w((lambda *s: torch.randn(*s, dtype=torch.bfloat16) * 0.05)(F)),
            "w2": _w((lambda *s: torch.randn(*s, dtype=torch.bfloat16) * 0.05)(F, D)),
            "b2": _w((lambda *s: torch.randn(*s, dtype=torch.bfloat16) * 0.05)(D)),
        }
    _B_in = _B_setup()

    return {
        "A_x": _A_in["x"],
        "A_wqkv": _A_in["wqkv"],
        "A_wo": _A_in["wo"],
        "B_x": _B_in["x"],
        "B_w1": _B_in["w1"],
        "B_b1": _B_in["b1"],
        "B_w2": _B_in["w2"],
        "B_b2": _B_in["b2"],
        "gate_w": _w((lambda *s: torch.randn(*s, dtype=torch.bfloat16) * 0.05)(576) * 16.0),
    }

def reference(A_x, A_wqkv, A_wo, B_x, B_w1, B_b1, B_w2, B_b2, gate_w):
    def _A_ref(x, wqkv, wo):
        B, S, D = x.shape
        H = 32; Dh = D // H
        qkv = (lambda x, *d: x.permute(*d))((x @ wqkv).reshape(B, S, 3, H, Dh), 2, 0, 3, 1, 4)
        q, k, v = qkv[0], qkv[1], qkv[2]
        scale = Dh ** -0.5
        scores = torch.einsum("bhqd,bhkd->bhqk", q, k) * scale
        p = _softmax(scores, axis=-1)
        o = torch.einsum("bhqk,bhkd->bhqd", p, v)
        return (lambda x, *d: x.permute(*d))(o, 0, 2, 1, 3).reshape(B, S, D) @ wo

    def _B_ref(x, w1, b1, w2, b2):
        h = torch.einsum("bsd,df->bsf", x, w1) + b1
        zero = torch.zeros_like(h)
        r = torch.where(h > zero, h, zero)
        h = r * r
        out = torch.einsum("bsf,fd->bsd", h, w2) + b2
        return out

    x = A_x
    g = _sigmoid((x * gate_w).sum(-1, keepdims=True))
    a = _A_ref(x, A_wqkv, A_wo)
    b = _B_ref(x, B_w1, B_b1, B_w2, B_b2)
    return g * a + (1 - g) * b
```

```python
from layout import *
class E:
    def __init__(s): s.l = []; s.uid = 0
    def __call__(s, *a):
        for x in a: s.l.append('    ' + x)
    def lab(s, n): s.l.append(n + ':')
    def u(s, p='L'): s.uid += 1; return f'{p}_{s.uid}'
    def txt(s): return '\n'.join(s.l) + '\n'
def vr(b, n): return f'v[{b}:{b+n-1}]' if n > 1 else f'v{b}'
def sr(b, n): return f's[{b}:{b+n-1}]' if n > 1 else f's{b}'
def srd(e, d, karg_off, size, tmp=4):
    e(f's_load_dwordx2 {sr(d,2)}, s[0:1], {karg_off}')
    e(f's_mov_b32 s{d+2}, {size}', f's_mov_b32 s{d+3}, 0x00020000')
def fix_srd(e, d): e(f's_and_b32 s{d+1}, s{d+1}, 0xffff')
def mfma(e, acc, a, b, c=None):
    e(f'v_mfma_f32_32x32x16_bf16 {vr(acc,16)}, {vr(a,4)}, {vr(b,4)}, {vr(acc,16) if c is None else c}')
def header(e, name):
    e.l += ['.text', f'.globl {name}', '.p2align 8', f'.type {name},@function']; e.lab(name)
def descr(name, vg, sg=96, lds=0):
    return f'''.section .rodata,"a"
.p2align 6
.amdhsa_kernel {name}
  .amdhsa_next_free_vgpr {vg}
  .amdhsa_next_free_sgpr {sg}
  .amdhsa_accum_offset {(vg+3)//4*4}
  .amdhsa_group_segment_fixed_size 0
  .amdhsa_kernarg_size 96
  .amdhsa_user_sgpr_count 2
  .amdhsa_user_sgpr_kernarg_segment_ptr 1
  .amdhsa_system_sgpr_workgroup_id_x 1
.end_amdhsa_kernel
'''
def pack_swap(e, src, dst):
    for g in range(4):
        for x in range(2):
            e(f'v_cvt_pk_bf16_f32 v{dst+2*g+x}, v{src+4*g+2*x}, v{src+4*g+2*x+1}')
    e('s_nop 1')
    for p in range(2):
        for x in range(2):
            e(f'v_permlane32_swap_b32 v{dst+4*p+x}, v{dst+4*p+2+x}')

import os
PROF = os.environ.get('PROF', '') != ''
def prof_start(e):
    if PROF: e('s_memtime s[80:81]', 's_memrealtime s[74:75]', 's_load_dwordx2 s[84:85], s[0:1], 80')
def prof_mark(e, k):
    if PROF: e(f's_memtime s[{86+2*k}:{87+2*k}]')
def prof_end(e, idx_sgpr, nmarks=0, stride=1):
    if PROF:
        sk = e.u('pe')
        e('s_memtime s[82:83]', 's_waitcnt lgkmcnt(0)', 's_cmp_lg_u32 s24, 0', f's_cbranch_scc1 {sk}', f's_cmp_ge_u32 {idx_sgpr}, {64//stride}', f's_cbranch_scc1 {sk}')
        e(f's_mul_i32 s79, {idx_sgpr}, {4*stride}', 'v_mov_b32 v3, s79')
        for k in range(nmarks):
            e(f's_sub_u32 s78, s{86+2*k}, s80', 'v_mov_b32 v2, s78', f'global_store_dword v3, v2, s[84:85] offset:{4*(k+1)}')
        e('s_sub_u32 s78, s82, s80', 'v_mov_b32 v2, s78', 'global_store_dword v3, v2, s[84:85]')
        e('s_memrealtime s[72:73]', 's_waitcnt lgkmcnt(0)', 's_sub_u32 s78, s72, s74', 'v_mov_b32 v2, s78', 'v_mov_b32 v3, 252', 'global_store_dword v3, v2, s[84:85]')
        e.lab(sk)
```

```python
from common import *
QSC = '0x3eae1b5d'
import struct
def fbits(x): return '0x%08x' % struct.unpack('<I', struct.pack('<f', x))[0]
QSC = fbits(18**-0.5 * 1.4426950408889634)
ACC = 128
SLOT = 30720; NS = 5; GOFF = SLOT*NS
VXO, VWO, VSO, VXR, VWR, VSP, VG, VL16 = 4, 6, 8, 10, 12, 13, 14, 15
LP = 16
SETA, SETB = 24, 48
def k1_role(e, role):
    tiles = {'ffn': ['ffn']*3, 'qkl': ['qk']*3, 'qkg': ['qk']*3, 'mix': ['qk', 'v', 'v'], 'vl': ['v']*3}[role]
    sp = {'qkl': 'qkl', 'qkg': 'gate', 'vl': 'vl'}.get(role)
    RS = 384; wstride = 9216 if role == 'ffn' else 3456
    spd = sp in ('qkl', 'vl')
    for i in range(2):
        e(f's_add_u32 s4, s24, {8*i}', 's_lshl_b32 s4, s4, 6', 'v_add_u32 v64, s4, v1')
        e('s_mov_b32 s5, 2731', 'v_mul_lo_u32 v65, v64, s5', 'v_lshrrev_b32 v65, 16, v65')
        e('v_mul_u32_u24 v66, 24, v65', 'v_sub_u32 v66, v64, v66')
        e('v_lshlrev_b32 v67, 1, v65', 'v_and_b32 v67, 4, v67', 'v_xor_b32 v66, v66, v67')
        if role == 'ffn':
            e('v_lshlrev_b32 v66, 4, v66', 'v_mul_u32_u24 v65, 9216, v65', 's_mul_i32 s4, s26, 384', f'v_add3_u32 v{VWO+i}, v65, v66, s4')
        else:
            e('v_lshrrev_b32 v67, 1, v66', 'v_mul_u32_u24 v67, 36, v67', 'v_and_b32 v66, 1, v66', 'v_lshl_add_u32 v66, v66, 4, v67')
            e('v_mul_u32_u24 v65, 3456, v65', 's_mul_i32 s4, s31, 72', f'v_add3_u32 v{VWO+i}, v65, v66, s4')
    if spd:
        e('s_lshl_b32 s4, s24, 2', 'v_lshrrev_b32 v64, 4, v1', 'v_add_u32 v64, s4, v64', 'v_mul_u32_u24 v64, 3456, v64')
        e('v_and_b32 v65, 15, v1', 'v_mul_u32_u24 v65, 36, v65', 's_mul_i32 s4, s36, 576', 's_add_u32 s4, s4, 32', f'v_add3_u32 v{VSO}, v64, v65, s4')
    def dma_list():
        L = []
        for i in range(2): L.append([f's_add_u32 m0, s30, s33' if i == 0 else f's_add_u32 m0, m0, 1024', 's_nop 0', f'buffer_load_dwordx4 v{VXO+i}, s[8:11], s28 offen lds'])
        L.append(['s_add_u32 m0, s30, s34', 's_nop 0', f'buffer_load_dwordx4 v{VWO}, s[12:15], s29 offen lds'])
        sk = e.u('w2')
        L.append(['s_cmp_ge_u32 s24, 4', f's_cbranch_scc1 {sk}', 's_add_u32 m0, m0, 8192', 's_nop 0', f'buffer_load_dwordx4 v{VWO+1}, s[12:15], s29 offen lds', ('lab', sk)])
        if spd: L.append(['s_add_u32 m0, s30, s37', 's_nop 0', f'buffer_load_dword v{VSO}, s[12:15], s29 offen lds'])
        L[-1] = L[-1] + ['s_add_u32 s28, s28, 64', f's_add_u32 s29, s29, {32*wstride}', 's_add_u32 s38, s38, 1', 's_cmp_ge_u32 s38, 18', 's_cselect_b32 s28, 0x40000000, s28', 's_cselect_b32 s29, 0x40000000, s29',
                         f's_add_u32 s30, s30, {SLOT}', f's_cmp_eq_u32 s30, {SLOT*NS}', 's_cselect_b32 s30, 0, s30']
        return L
    def em(d):
        for x in d:
            if isinstance(x, tuple): e.lab(x[1])
            else: e(x)
    PER = 4 if spd else 3
    e('s_lshl_b32 s33, s24, 11', 's_lshl_b32 s34, s24, 10', 's_add_u32 s34, s34, 16384', 's_lshl_b32 s37, s24, 8', f's_add_u32 s37, s37, {16384+12288}', 's_mov_b32 s28, 0', 's_mov_b32 s29, 0', 's_mov_b32 s30, 0', 's_mov_b32 s38, 0')
    if role == 'ffn':
        e('v_lshrrev_b32 v64, 5, v1', 'v_lshlrev_b32 v64, 3, v64', 's_mul_i32 s4, s26, 384', 's_lshl_b32 s5, s39, 6', 's_add_u32 s4, s4, s5', 'v_add_u32 v64, s4, v64')
        for t in range(3):
            for g in range(4): e(f'buffer_load_dwordx2 v[{72+8*t+2*g}:{73+8*t+2*g}], v64, s[20:23], 0 offen offset:{128*t+16*g}')
    if sp == 'gate':
        e('s_cmp_lg_u32 s24, 0', 's_cbranch_scc1 k1_nog', f's_mov_b32 m0, {GOFF}', 'v_lshlrev_b32 v64, 4, v1', 'buffer_load_dwordx4 v64, s[20:23], 0 offen lds',
          f's_mov_b32 m0, {GOFF+1024}', 'v_add_u32 v64, 1024, v64', 'buffer_load_dwordx4 v64, s[20:23], 0 offen lds')
        e.lab('k1_nog')
        e('v_lshrrev_b32 v64, 5, v1', 'v_lshlrev_b32 v64, 4, v64', f'v_add_u32 v{VG}, {GOFF}, v64')
    for st in range(NS-1):
        for d in dma_list(): em(d)
    e('v_and_b32 v64, 15, v1', 'v_lshrrev_b32 v65, 5, v1', 'v_lshrrev_b32 v66, 2, v64', 'v_lshl_add_u32 v66, v65, 3, v66')
    e('v_bfe_u32 v67, v1, 4, 1', 'v_lshlrev_b32 v67, 5, v67', 'v_and_b32 v68, 3, v64', 'v_lshl_add_u32 v67, v68, 3, v67')
    e('v_mul_u32_u24 v68, 64, v66', f'v_add_u32 v{LP+3}, v68, v67', f'v_add_u32 v{LP+3}, {16384+12288}, v{LP+3}')
    e(f'v_mul_u32_u24 v66, {RS}, v66', 'v_add_u32 v66, v66, v67', 'v_bfe_u32 v67, v1, 3, 1', 'v_xor_b32 v67, s39, v67', 'v_lshl_add_u32 v66, v67, 6, v66', f'v_add_u32 v{LP+2}, 16384, v66')
    for s in range(2):
        e('v_and_b32 v64, 31, v1', 'v_bfe_u32 v65, v1, 2, 2', 'v_lshrrev_b32 v66, 5, v1', f'v_add_u32 v66, {2*s}, v66', 'v_xor_b32 v65, v65, v66')
        e('v_lshlrev_b32 v64, 6, v64', 'v_lshl_add_u32 v64, v65, 4, v64', 's_lshr_b32 s4, s24, 1', 's_lshl_b32 s4, s4, 12', f'v_add_u32 v{LP+s}, s4, v64')
    nacc = 6 + (1 if sp else 0)
    if role != 'ffn':
        for r in range(16*nacc): e(f'v_mov_b32 v{ACC+r}, 0')
    e(f's_waitcnt vmcnt({PER*(NS-2)})')
    if role == 'ffn':
        for t in range(3):
            for g in range(4):
                for x in range(2):
                    r = 72+8*t+2*g+x
                    for m in range(2): e(f'v_lshlrev_b32 v{ACC+16*(2*t+m)+4*g+2*x}, 16, v{r}', f'v_and_b32 v{ACC+16*(2*t+m)+4*g+2*x+1}, 0xffff0000, v{r}')
    def addr():
        e(f'v_add_u32 v{VXR}, s40, v{LP}', f'v_add_u32 v{VXR+1}, s40, v{LP+1}', f'v_add_u32 v{VWR}, s40, v{LP+2}')
        if spd: e(f'v_add_u32 v{VSP}, s40, v{LP+3}')
    def reads(S, s):
        L = []
        for m in range(2): L.append(f'ds_read_b128 {vr(S+4*m,4)}, v{VXR+s} offset:{2048*m}')
        if not os.environ.get('NORD'):
            for t in range(3):
                for kk in range(2): L.append(f'ds_read_b64_tr_b16 {vr(S+8+4*t+2*kk,2)}, v{VWR} offset:{(16*s+4*kk)*RS+128*t}')
            if spd:
                for kk in range(2): L.append(f'ds_read_b64_tr_b16 {vr(S+20+2*kk,2)}, v{VSP} offset:{(16*s+4*kk)*64}')
            if sp == 'gate': L.append(f'ds_read_b128 {vr(S+20,4)}, v{VG} offset:{32*s}')
        return L
    def mfmas(S):
        L = []
        for t in range(3):
            for m in range(2):
                a, b = (S+4*m, S+8+4*t) if tiles[t] == 'v' else (S+8+4*t, S+4*m)
                L.append(f'v_mfma_f32_32x32x16_bf16 {vr(ACC+16*(2*t+m),16)}, {vr(a,4)}, {vr(b,4)}, {vr(ACC+16*(2*t+m),16)}')
        if sp:
            for wn in range(2):
                pass
        return L
    def special(S):
        if not sp: return
        l0, l1 = e.u('sp0'), e.u('sp1')
        e('s_cmp_eq_u32 s39, 0', f's_cbranch_scc1 {l0}')
        for wn in (1, 0):
            if wn == 0: e.lab(l0)
            a, b = (S+4*wn, S+20) if sp == 'vl' else (S+20, S+4*wn)
            e(f'v_mfma_f32_32x32x16_bf16 {vr(ACC+96,16)}, {vr(a,4)}, {vr(b,4)}, {vr(ACC+96,16)}')
            if wn == 1: e(f's_branch {l1}')
        e.lab(l1)
    def half(S, R, D):
        M = [] if os.environ.get('NOMFMA') else mfmas(S)
        R = list(R); D = list(D)
        for x in R[:4]: e(x)
        R = R[4:]
        for i in range(6):
            if M: e(M[i])
            for x in R[:2]: e(x)
            R = R[2:]
            if D: em(D.pop(0))
        for x in R: e(x)
        for d in D: em(d)
        if not os.environ.get('NOMFMA'): special(S)
    e('s_barrier', 's_mov_b32 s40, 0')
    addr()
    for x in reads(SETA, 0): e(x)
    e('s_mov_b32 s27, 0')
    lp = e.u('k1loop'); e.lab(lp)
    e('s_waitcnt lgkmcnt(0)')
    half(SETA, reads(SETB, 1), [] if os.environ.get('NODMA') else dma_list())
    e('s_waitcnt lgkmcnt(0)', f's_waitcnt vmcnt({PER*(NS-2)})', 's_barrier')
    e(f's_add_u32 s40, s40, {SLOT}', f's_cmp_eq_u32 s40, {SLOT*NS}', 's_cselect_b32 s40, 0, s40')
    addr()
    if sp == 'gate': e(f'v_add_u32 v{VG}, 64, v{VG}')
    half(SETB, reads(SETA, 0), [])
    e('s_add_u32 s27, s27, 1', 's_cmp_lt_u32 s27, 18', f's_cbranch_scc1 {lp}')
    e('s_waitcnt lgkmcnt(0)', 's_nop 15', 's_nop 7')
    prof_mark(e, 0)
    items = [(tiles[t], ACC+16*(2*t+m), t, m) for t in range(3) for m in range(2)]
    if sp: items.append((sp, ACC+96, 0, 0))
    for k, (ty, A, t, m) in enumerate(items):
        P = 64 + 8*(k % 4)
        if ty == 'ffn':
            for r in range(16): e(f'v_max_f32 v{96+r}, 0, v{A+r}')
            for r in range(16): e(f'v_mul_f32 v{A+r}, v{96+r}, v{96+r}')
            pack_swap(e, A, P)
            e(f's_add_u32 s4, s41, {m}', f's_mul_i32 s4, s4, {288*1024}', f's_mul_i32 s5, s26, {12*1024}', 's_add_u32 s4, s4, s5', 's_lshl_b32 s5, s39, 11', 's_add_u32 s4, s4, s5', f's_add_u32 s4, s4, {HF+4*t*1024}')
            e(f'buffer_store_dwordx4 {vr(P,4)}, v{VL16}, s[16:19], s4 offen', f'buffer_store_dwordx4 {vr(P+4,4)}, v{VL16}, s[16:19], s4 offen offset:1024')
        elif ty == 'qk':
            e(f's_add_u32 s5, s31, {2*t}', 's_add_u32 s5, s5, s39', 's_cmp_lt_u32 s5, 16', f's_cselect_b32 s6, {QSC}, 1.0')
            for r in range(16): e(f'v_mul_f32 v{A+r}, s6, v{A+r}')
            pack_swap(e, A, P)
            e('s_lshl_b32 s5, s5, 17', f's_add_u32 s4, s41, {m}', 's_lshl_b32 s4, s4, 10', 's_add_u32 s4, s4, s5', f's_add_u32 s4, s4, {QF}', 's_add_u32 s5, s4, 65536')
            e(f'buffer_store_dwordx4 {vr(P,4)}, v{VL16}, s[16:19], s4 offen', f'buffer_store_dwordx4 {vr(P+4,4)}, v{VL16}, s[16:19], s5 offen')
        elif ty in ('v', 'vl'):
            for g in range(4):
                for x in range(2): e(f'v_cvt_pk_bf16_f32 v{P+2*g+x}, v{A+4*g+2*x}, v{A+4*g+2*x+1}')
            if ty == 'v':
                e('v_bfe_u32 v100, v1, 4, 1', 'v_lshlrev_b32 v100, 17, v100', 'v_and_b32 v101, 47, v1', 'v_lshl_add_u32 v100, v101, 4, v100')
                e(f's_add_u32 s5, s31, {2*t}', 's_add_u32 s5, s5, s39', 's_sub_u32 s5, s5, 32', 's_lshl_b32 s5, s5, 18', f's_add_u32 s4, s41, {m}', 's_lshl_b32 s4, s4, 11')
            else:
                e('v_bfe_u32 v100, v1, 1, 4', 'v_lshlrev_b32 v100, 17, v100', 'v_and_b32 v101, 33, v1', 'v_add_u32 v101, 16, v101', 'v_lshl_add_u32 v100, v101, 4, v100')
                e('s_sub_u32 s5, s36, 4', 's_lshl_b32 s5, s5, 21', 's_lshl_b32 s4, s32, 11')
            e('s_add_u32 s4, s4, s5', f's_add_u32 s4, s4, {VF}')
            e(f'buffer_store_dwordx4 {vr(P,4)}, v100, s[16:19], s4 offen', f'buffer_store_dwordx4 {vr(P+4,4)}, v100, s[16:19], s4 offen offset:1024')
            if ty == 'vl':
                e('v_bfe_u32 v102, v1, 1, 4', 'v_lshlrev_b32 v102, 17, v102', 'v_and_b32 v101, 32, v1', 'v_add_u32 v101, 18, v101', 'v_lshl_add_u32 v102, v101, 4, v102')
                for x in range(4): e(f'v_mov_b32 v{104+x}, 0x3f803f80')
                e('buffer_store_dwordx4 v[104:107], v102, s[16:19], s4 offen', 'buffer_store_dwordx4 v[104:107], v102, s[16:19], s4 offen offset:1024')
        elif ty == 'qkl':
            e('s_cmp_lt_u32 s36, 2', f's_cselect_b32 s6, {QSC}, 1.0')
            for r in range(16): e(f'v_mul_f32 v{A+r}, s6, v{A+r}')
            for g in range(4):
                for x in range(2): e(f'v_cvt_pk_bf16_f32 v{P+2*g+x}, v{A+4*g+2*x}, v{A+4*g+2*x+1}')
            e('v_lshrrev_b32 v100, 5, v1', 'v_lshlrev_b32 v100, 14, v100', 'v_and_b32 v101, 31, v1', 'v_lshl_add_u32 v100, v101, 2, v100')
            for g in range(4):
                for x in range(2):
                    e('s_lshl_b32 s4, s32, 7', 's_lshl_b32 s5, s36, 17', 's_add_u32 s4, s4, s5', f's_add_u32 s4, s4, {Q2+(4*g+x)*8192}', f'buffer_store_dword v{P+2*g+x}, v100, s[16:19], s4 offen')
        elif ty == 'gate':
            e(f'v_mul_f32 v100, 0xbfb8aa3b, v{A}', 'v_exp_f32 v100, v100', 's_nop 0', 'v_add_f32 v100, 1.0, v100', 'v_rcp_f32 v100, v100')
            e('v_and_b32 v101, 31, v1', 'v_lshlrev_b32 v101, 2, v101', 's_lshl_b32 s4, s32, 7', f's_add_u32 s4, s4, {GT}', 's_nop 0', 'buffer_store_dword v100, v101, s[16:19], s4 offen')
        e('s_nop 1')
    e('s_waitcnt vmcnt(0)') if PROF else None
    if PROF: e('s_lshl_b32 s77, s25, 6', 's_add_u32 s77, s77, s26', 's_lshr_b32 s77, s77, 0')
    e('s_mov_b32 s77, s2') if PROF else None
    if PROF: e('s_waitcnt lgkmcnt(0)', 's_lshl_b32 s76, s76, 24', 's_add_u32 s80, s80, s76', 's_sub_u32 s80, s80, s76', 's_sub_u32 s80, s80, s76')
    prof_end(e, 's77', 1, 2)
    e('s_endpgm')

def k1(e):
    header(e, 'k1_kernel')
    e('s_cmp_ge_u32 s2, 256', 's_cbranch_scc1 k1_end')
    e('s_and_b32 s4, s2, 7', 's_lshr_b32 s5, s2, 3')
    e('s_and_b32 s6, s4, 1', 's_lshl_b32 s6, s6, 2', 's_and_b32 s7, s5, 3', 's_add_u32 s25, s6, s7')
    e('s_lshr_b32 s6, s4, 1', 's_lshl_b32 s6, s6, 3', 's_lshr_b32 s7, s5, 2', 's_add_u32 s26, s6, s7')
    if os.environ.get('SAME'): e('s_mov_b32 s25, 0', 's_and_b32 s26, s26, 1')
    if PROF: e('s_getreg_b32 s76, hwreg(HW_REG_XCC_ID)', 's_and_b32 s76, s76, 15')
    e('v_lshrrev_b32 v2, 6, v0', 'v_and_b32 v1, 63, v0', 's_nop 0', 'v_readfirstlane_b32 s24, v2', f'v_lshlrev_b32 v{VL16}, 4, v1')
    prof_start(e)
    srd(e, 16, 88, WSEND)
    e('s_lshl_b32 s32, s25, 3', 's_add_u32 s32, s32, s24')
    e('s_cmp_ge_u32 s26, 24', 's_cbranch_scc1 k1_qkv')
    srd(e, 8, 0, 2359296); srd(e, 12, 32, 5308416); srd(e, 20, 40, 9216)
    e('s_branch k1_go')
    e.lab('k1_qkv')
    srd(e, 8, 0, 2359296); srd(e, 12, 8, 1990656); srd(e, 20, 64, 1152)
    e.lab('k1_go')
    e('s_and_b32 s39, s24, 1', 's_lshr_b32 s41, s24, 1', 's_lshl_b32 s41, s41, 1', 's_lshl_b32 s4, s25, 3', 's_add_u32 s41, s41, s4')
    for i in range(2):
        e('v_lshrrev_b32 v64, 2, v1', f'v_add_u32 v64, {16*i}, v64', 'v_bfe_u32 v65, v64, 2, 2', 'v_and_b32 v66, 3, v1', 'v_xor_b32 v65, v65, v66')
        e('s_lshl_b32 s4, s32, 5', 'v_add_u32 v64, s4, v64', 'v_mul_u32_u24 v64, 1152, v64', f'v_lshl_add_u32 v{VXO+i}, v65, 4, v64')
    e('s_waitcnt lgkmcnt(0)')
    for d in (8, 12, 16, 20): fix_srd(e, d)
    e('s_sub_u32 s35, s26, 24', 's_mul_i32 s31, s35, 6')
    e('s_sub_u32 s4, s35, 2', 's_cmp_lt_u32 s35, 4', 's_cselect_b32 s36, s35, s4')
    e('s_cmp_lt_u32 s26, 24', 's_cbranch_scc1 k1_ffn', 's_cmp_lt_u32 s26, 28', 's_cbranch_scc1 k1_qkl', 's_cmp_eq_u32 s26, 28', 's_cbranch_scc1 k1_qkg', 's_cmp_eq_u32 s26, 29', 's_cbranch_scc1 k1_mix', 's_branch k1_vl')
    for r in ('ffn', 'qkl', 'qkg', 'mix', 'vl'):
        e.lab('k1_' + r); k1_role(e, r)
    e.lab('k1_end'); e('s_endpgm')
```

```python
from common import *
import os
NATT, NG2, NPREP = 256, 240, 18
LAUNCH = f'; @launch kernel=k2_kernel grid=({NATT+NG2+NPREP},1,1) block=(256,1,1) lds=61440'
NV = 256
def em(e, d):
    for x in d:
        if isinstance(x, tuple): e.lab(x[1])
        else: e(x)

def attn(e):
    TS = 3328; ST = 4*TS; NSL = 3
    S = [[0, 16], [32, 48]]
    B = 8
    S = [[B, B+16], [B+32, B+48]]
    O = [72, 88]; P = [104, 112]; M = [120, 136]; Q = [152, 160]; K = [168, 176]; V = [184, 192]
    T = 200
    e('s_and_b32 s4, s2, 7', 's_lshr_b32 s5, s2, 3', 's_lshl_b32 s4, s4, 2', 's_and_b32 s6, s5, 3', 's_add_u32 s25, s4, s6', 's_lshr_b32 s26, s5, 2')
    e('s_lshl_b32 s27, s26, 3', 's_lshl_b32 s4, s24, 1', 's_add_u32 s27, s27, s4')
    e('v_and_b32 v4, 31, v1', 'v_lshlrev_b32 v4, 2, v4')
    e('v_lshlrev_b32 v5, 2, v1')
    e('s_lshl_b32 s4, s25, 16', 's_lshl_b32 s5, s27, 10', 's_add_u32 s4, s4, s5', f's_add_u32 s4, s4, {QF}')
    e('s_lshl_b32 s6, s25, 13', 's_lshl_b32 s5, s27, 7', 's_add_u32 s6, s6, s5', f's_add_u32 s6, s6, {Q2}')
    for q in range(2):
        e(f'buffer_load_dwordx4 {vr(Q[q],4)}, v3, s[16:19], s4 offen offset:{1024*q}', f'buffer_load_dword v{Q[q]+4}, v4, s[16:19], s6 offen offset:{128*q}')
        for r in range(1, 4): e(f'v_mov_b32 v{Q[q]+4+r}, 0', f'v_mov_b32 v{K[q]+4+r}, 0')
        for r in range(16): e(f'v_mov_b32 v{M[q]+r}, 0')
    e('s_lshl_b32 s28, s25, 16', 's_lshl_b32 s4, s24, 10', 's_add_u32 s28, s28, s4', f's_add_u32 s28, s28, {KF}')
    e('s_lshl_b32 s29, s25, 13', 's_lshl_b32 s4, s24, 7', 's_add_u32 s29, s29, s4', f's_add_u32 s29, s29, {K2}')
    e('s_lshl_b32 s30, s25, 17', 's_lshl_b32 s4, s24, 11', 's_add_u32 s30, s30, s4', f's_add_u32 s30, s30, {VF}')
    e(f's_mul_i32 s31, s24, {TS}')
    e('s_mov_b32 s44, 0')
    e('s_waitcnt vmcnt(0)', 'v_cmp_gt_u32 vcc, 32, v1')
    for q in range(2): e(f'v_cndmask_b32 v{Q[q]+4}, 0, v{Q[q]+4}, vcc')
    e.lab('att_pass')
    e('s_mov_b32 s33, s28', 's_mov_b32 s34, s29', 's_mov_b32 s35, s30', 's_mov_b32 s36, s31', 's_mov_b32 s37, 0', 's_mov_b32 s40, 0')
    def dma():
        return [['s_mov_b32 m0, s36', 's_nop 0', 'buffer_load_dwordx4 v3, s[16:19], s33 offen lds'],
                ['s_add_u32 m0, s36, 1024', 's_add_u32 s38, s35, 1024', 'buffer_load_dwordx4 v3, s[16:19], s35 offen lds'],
                ['s_add_u32 m0, s36, 2048', 's_nop 0', 'buffer_load_dwordx4 v3, s[16:19], s38 offen lds'],
                ['s_add_u32 m0, s36, 3072', 's_nop 0', 'buffer_load_dword v4, s[16:19], s34 offen lds',
                 's_add_u32 s33, s33, 4096', 's_add_u32 s34, s34, 512', 's_add_u32 s35, s35, 8192', 's_add_u32 s37, s37, 1',
                 's_cmp_ge_u32 s37, 16', 's_cselect_b32 s33, 0x40000000, s33', 's_cselect_b32 s34, 0x40000000, s34', 's_cselect_b32 s35, 0x40000000, s35',
                 f's_add_u32 s36, s36, {ST}', f's_cmp_ge_u32 s36, {ST*NSL}', f's_cselect_b32 s38, {ST*NSL}, 0', 's_sub_u32 s36, s36, s38']]
    for st in range(3):
        for d in dma(): em(e, d)
    for q in range(2):
        for r in range(16): e(f'v_mov_b32 v{O[q]+r}, 0')
        for r in range(8): e(f'v_mov_b32 v{P[q]+r}, 0')
    for r in range(8): e(f'v_mov_b32 v{V[1]+r}, 0')
    def rdK(par, tl): return [f'ds_read_b128 {vr(K[par],4)}, v6 offset:{TS*tl}', f'ds_read_b32 v{K[par]+4}, v7 offset:{TS*tl+3072}']
    def rdV(par, tl): return [f'ds_read_b128 {vr(V[par],4)}, v6 offset:{TS*tl+1024}', f'ds_read_b128 {vr(V[par]+4,4)}, v6 offset:{TS*tl+2048}']
    def qk(par, q, left):
        c = vr(S[par][q], 16) if left else vr(M[q], 16)
        return f'v_mfma_f32_32x32x16_bf16 {vr(S[par][q],16)}, {vr(K[par]+4*left,4)}, {vr(Q[q]+4*left,4)}, {c}'
    def pv(par, q, s): return f'v_mfma_f32_32x32x16_bf16 {vr(O[q],16)}, {vr(V[par]+4*s,4)}, {vr(P[q]+4*s,4)}, {vr(O[q],16)}'
    e('s_waitcnt vmcnt(8)', 's_barrier', 'v_mov_b32 v6, v3', 'v_mov_b32 v7, v5')
    for x in rdK(0, 0) + rdV(0, 0): e(x)
    e('s_waitcnt lgkmcnt(0)')
    for q in range(2): e(qk(0, q, 0))
    for q in range(2): e(qk(0, q, 1))
    e('s_nop 15', 's_mov_b32 s41, 0')
    lp = 'att_loop'; e.lab(lp)
    for tl in range(4):
        par = tl & 1; nx = par ^ 1
        D = []
        if tl == 3:
            e('s_waitcnt vmcnt(4) lgkmcnt(0)', 's_barrier')
            e(f's_add_u32 s40, s40, {ST}', f's_cmp_eq_u32 s40, {ST*NSL}', 's_cselect_b32 s40, 0, s40', 'v_add_u32 v6, s40, v3', 'v_add_u32 v7, s40, v5')
            D = dma()
        ntl = (tl+1) & 3
        for x in rdK(nx, ntl): e(x)
        mf = [pv(nx, 1, 0), pv(nx, 1, 1), qk(nx, 0, 0), qk(nx, 1, 0), pv(par, 0, 0), qk(nx, 0, 1), pv(par, 0, 1), qk(nx, 1, 1)]
        for b in range(8):
            q = b // 4; r0 = 4*(b % 4); sb = S[par][q]
            for r in range(4): e(f'v_exp_f32 v{sb+r0+r}, v{sb+r0+r}')
            if b == 2: e('s_waitcnt lgkmcnt(2)')
            e(mf[b])
            for x in range(2): e(f'v_cvt_pk_bf16_f32 v{P[q]+r0//2+x}, v{sb+r0+2*x}, v{sb+r0+2*x+1}')
            if b == 1:
                for x in rdV(nx, ntl): e(x)
            if D and b >= 2: em(e, D.pop(0))
    e('s_add_u32 s41, s41, 1', 's_cmp_lt_u32 s41, 16', f's_cbranch_scc1 {lp}')
    e('s_nop 1', pv(1, 1, 0), pv(1, 1, 1), 's_waitcnt vmcnt(0) lgkmcnt(0)', 's_nop 15', 's_nop 7')
    e('s_cmp_lg_u32 s44, 0', 's_cbranch_scc1 att_fin')
    e('s_mov_b64 s[46:47], 0')
    for q in range(2):
        l = O[q]+10
        e(f'v_cmp_nle_f32 vcc, 0x21800000, v{l}', 's_and_b32 vcc_hi, vcc_hi, 0', 's_or_b64 s[46:47], s[46:47], vcc')
        e(f'v_cmp_nge_f32 vcc, 0x5d800000, v{l}', 's_and_b32 vcc_hi, vcc_hi, 0', 's_or_b64 s[46:47], s[46:47], vcc')
        for r in range(10):
            e(f'v_cmp_class_f32 vcc, v{O[q]+r}, v{T}') if False else None
            e(f'v_and_b32 v{T}, 0x7f800000, v{O[q]+r}', f'v_cmp_eq_u32 vcc, 0x7f800000, v{T}')
            if r >= 8: e('s_and_b32 vcc_hi, vcc_hi, 0')
            e('s_or_b64 s[46:47], s[46:47], vcc')
    e('s_cmp_lg_u64 s[46:47], 0', 's_cselect_b32 s4, 1, 0', f'v_mov_b32 v{T}, s4', 's_lshl_b32 s5, s24, 2', f's_add_u32 s5, s5, {ST*NSL}', f'v_mov_b32 v{T+1}, s5')
    e(f'ds_write_b32 v{T+1}, v{T}', 's_waitcnt lgkmcnt(0)', 's_barrier', f'v_mov_b32 v{T+1}, {ST*NSL}', f'ds_read_b128 {vr(T+4,4)}, v{T+1}', 's_waitcnt lgkmcnt(0)')
    e(f'v_or_b32 v{T+4}, v{T+4}, v{T+5}', f'v_or_b32 v{T+6}, v{T+6}, v{T+7}', f'v_or_b32 v{T+4}, v{T+4}, v{T+6}', 's_nop 1', f'v_readfirstlane_b32 s4, v{T+4}', 's_cmp_eq_u32 s4, 0', 's_cbranch_scc1 att_fin')
    e('s_mov_b32 s44, 1')
    for q in range(2):
        for r in range(16): e(f'v_mov_b32 v{M[q]+r}, 0xff800000')
    e('s_lshl_b32 s33, s25, 16', f's_add_u32 s33, s33, {KF}', 's_lshl_b32 s34, s25, 13', f's_add_u32 s34, s34, {K2}', 's_mov_b32 s41, 0')
    e.lab('att_mx')
    e(f'buffer_load_dwordx4 {vr(K[0],4)}, v3, s[16:19], s33 offen', f'buffer_load_dword v{K[0]+4}, v4, s[16:19], s34 offen', 's_waitcnt vmcnt(0)')
    for q in range(2):
        e(f'v_mfma_f32_32x32x16_bf16 {vr(S[0][q],16)}, {vr(K[0],4)}, {vr(Q[q],4)}, 0', f'v_mfma_f32_32x32x16_bf16 {vr(S[0][q],16)}, {vr(K[0]+4,4)}, {vr(Q[q]+4,4)}, {vr(S[0][q],16)}')
    e('s_nop 15', 's_nop 7')
    for q in range(2):
        for r in range(16): e(f'v_max_f32 v{M[q]}, v{M[q]}, v{S[0][q]+r}')
    e('s_add_u32 s33, s33, 1024', 's_add_u32 s34, s34, 128', 's_add_u32 s41, s41, 1', 's_cmp_lt_u32 s41, 64', 's_cbranch_scc1 att_mx')
    for q in range(2):
        e(f'v_mov_b32 v{T}, v{M[q]}', f'v_mov_b32 v{T+1}, v{M[q]}', 's_nop 1', f'v_permlane32_swap_b32 v{T}, v{T+1}', 's_nop 1', f'v_max_f32 v{T}, v{T}, v{T+1}', f'v_sub_f32 v{T}, 0, v{T}')
        for r in range(16): e(f'v_mov_b32 v{M[q]+r}, v{T}')
    e('s_barrier', 's_branch att_pass')
    e.lab('att_fin')
    for q in range(2):
        e(f'v_mov_b32 v{T}, v{O[q]+10}', f'v_mov_b32 v{T+1}, v{O[q]+10}', 's_nop 1', f'v_permlane32_swap_b32 v{T}, v{T+1}', 's_nop 1', f'v_rcp_f32 v{T}, v{T}', 's_nop 0')
        for r in range(10): e(f'v_mul_f32 v{O[q]+r}, v{T}, v{O[q]+r}')
        for x in range(5): e(f'v_cvt_pk_bf16_f32 v{T+4+x}, v{O[q]+2*x}, v{O[q]+2*x+1}')
        e('s_nop 1')
        for x in range(2): e(f'v_permlane32_swap_b32 v{T+4+x}, v{T+6+x}')
        e(f's_add_u32 s4, s27, {q}', f's_mul_i32 s4, s4, {36*1024}', f's_add_u32 s4, s4, {OF}', 's_lshl_b32 s5, s25, 10', 's_add_u32 s5, s5, s4', 's_nop 0')
        e(f'buffer_store_dwordx4 {vr(T+4,4)}, v3, s[16:19], s5 offen')
        e('s_lshr_b32 s5, s25, 3', 's_add_u32 s5, s5, 32', 's_lshl_b32 s5, s5, 10', 's_add_u32 s4, s4, s5', 's_bfe_u32 s5, s25, 0x10002', 's_lshl_b32 s5, s5, 9', 's_add_u32 s4, s4, s5',
          's_and_b32 s5, s25, 3', 's_lshl_b32 s5, s5, 2', 's_add_u32 s4, s4, s5')
        sk = e.u('lo')
        e(f'v_lshlrev_b32 v{T+2}, 4, v1', 's_mov_b32 exec_hi, 0', f'buffer_store_dword v{T+8}, v{T+2}, s[16:19], s4 offen', 's_mov_b32 exec_hi, -1', 's_nop 1')
    e('s_endpgm')

def gemm2(e):
    SL = 20480; NSL = 3; RS = 384
    ACC = 128; X = 8; W = 24
    e(f's_sub_u32 s4, s2, {NATT}')
    e('s_and_b32 s5, s4, 7', 's_lshr_b32 s6, s4, 3', 's_and_b32 s7, s6, 1', 's_lshl_b32 s5, s5, 1', 's_add_u32 s25, s5, s7', 's_lshr_b32 s6, s6, 1')
    e('s_mul_i32 s7, s6, 43', 's_lshr_b32 s26, s7, 7', 's_mul_i32 s7, s26, 3', 's_sub_u32 s27, s6, s7')
    e('s_mul_i32 s28, s26, 29', 's_cmp_eq_u32 s26, 4', 's_cselect_b32 s29, 28, 29')
    srd(e, 12, 48, 4608*1152)
    e('s_lshl_b32 s4, s25, 2', 's_add_u32 s4, s4, s24', f's_mul_i32 s4, s4, {288*1024}', 's_lshl_b32 s5, s28, 11', 's_add_u32 s33, s4, s5', f's_add_u32 s33, s33, {HF}')
    e(f's_mul_i32 s34, s28, {32*1152}', 's_mul_i32 s4, s27, 384', 's_add_u32 s34, s34, s4')
    for i in range(3):
        e(f's_add_u32 s4, s24, {4*i}', 's_lshl_b32 s4, s4, 6', 'v_add_u32 v64, s4, v1', 's_mov_b32 s5, 2731', 'v_mul_lo_u32 v65, v64, s5', 'v_lshrrev_b32 v65, 16, v65')
        e('v_mul_u32_u24 v66, 24, v65', 'v_sub_u32 v66, v64, v66', 'v_lshlrev_b32 v67, 1, v65', 'v_and_b32 v67, 4, v67', 'v_xor_b32 v66, v66, v67', 'v_lshlrev_b32 v66, 4, v66')
        e(f'v_mul_u32_u24 v65, 1152, v65', f'v_add_u32 v{4+i}, v65, v66') if i < 2 else e('v_mul_u32_u24 v65, 1152, v65', 'v_add_u32 v48, v65, v66')
    VW = [4, 5, 48]
    e('s_lshl_b32 s35, s24, 11', 's_lshl_b32 s36, s24, 10', 's_add_u32 s36, s36, 8192', 's_mov_b32 s30, 0', 's_mov_b32 s38, 0')
    e('s_waitcnt lgkmcnt(0)'); fix_srd(e, 12)
    def dma():
        L = [['s_add_u32 m0, s30, s35', 's_nop 0', 'buffer_load_dwordx4 v3, s[16:19], s33 offen lds'], ['buffer_load_dwordx4 v3, s[16:19], s33 offen offset:1024 lds']]
        for i in range(3): L.append(['s_add_u32 m0, s30, s36' if i == 0 else 's_add_u32 m0, m0, 4096', 's_nop 0', f'buffer_load_dwordx4 v{VW[i]}, s[12:15], s34 offen lds'])
        L[-1] += ['s_add_u32 s33, s33, 2048', f's_add_u32 s34, s34, {32*1152}', 's_add_u32 s38, s38, 1', 's_cmp_ge_u32 s38, s29', 's_cselect_b32 s33, 0x40000000, s33', 's_cselect_b32 s34, 0x40000000, s34',
                  f's_add_u32 s30, s30, {SL}', f's_cmp_eq_u32 s30, {SL*NSL}', 's_cselect_b32 s30, 0, s30']
        return L
    for st in range(2):
        for d in dma(): em(e, d)
    e('s_and_b32 s39, s24, 1', 's_lshr_b32 s41, s24, 1')
    e('v_and_b32 v64, 15, v1', 'v_lshrrev_b32 v65, 5, v1', 'v_lshrrev_b32 v66, 2, v64', 'v_lshl_add_u32 v66, v65, 3, v66')
    e('v_bfe_u32 v67, v1, 4, 1', 'v_lshlrev_b32 v67, 5, v67', 'v_and_b32 v68, 3, v64', 'v_lshl_add_u32 v67, v68, 3, v67')
    e(f'v_mul_u32_u24 v66, {RS}, v66', 'v_add_u32 v66, v66, v67', 'v_bfe_u32 v67, v1, 3, 1', 'v_xor_b32 v67, s39, v67', 'v_lshl_add_u32 v66, v67, 6, v66', 'v_add_u32 v50, 8192, v66')
    e('s_lshl_b32 s4, s41, 12', 'v_add_u32 v51, s4, v3')
    for r in range(96): e(f'v_mov_b32 v{ACC+r}, 0')
    e('s_mov_b32 s40, 0', 's_mov_b32 s42, 0')
    lp = 'g2_loop'; e.lab(lp)
    e('s_waitcnt vmcnt(5)', 's_barrier', 'v_add_u32 v52, s40, v50', 'v_add_u32 v53, s40, v51')
    R = []
    for s in range(2):
        for m in range(2): R.append(f'ds_read_b128 {vr(X+8*s+4*m,4)}, v53 offset:{2048*m+1024*s}')
        for t in range(3):
            for kk in range(2): R.append(f'ds_read_b64_tr_b16 {vr(W+12*s+4*t+2*kk,2)}, v52 offset:{(16*s+4*kk)*RS+128*t}')
    D = dma()
    for x in R[:8]: e(x)
    for d in D[:2]: em(e, d)
    for x in R[8:]: e(x)
    e('s_waitcnt lgkmcnt(8)')
    D = D[2:]
    for s in range(2):
        if s == 1: e('s_waitcnt lgkmcnt(0)')
        for t in range(3):
            for m in range(2):
                e(f'v_mfma_f32_32x32x16_bf16 {vr(ACC+16*(2*t+m),16)}, {vr(W+12*s+4*t,4)}, {vr(X+8*s+4*m,4)}, {vr(ACC+16*(2*t+m),16)}')
            if D: em(e, D.pop(0))
    e(f's_add_u32 s40, s40, {SL}', f's_cmp_eq_u32 s40, {SL*NSL}', 's_cselect_b32 s40, 0, s40', 's_add_u32 s42, s42, 1', 's_cmp_lt_u32 s42, s29', f's_cbranch_scc1 {lp}')
    e('s_waitcnt vmcnt(0)', 's_nop 15', 's_nop 7')
    for t in range(3):
        for m in range(2):
            A = ACC+16*(2*t+m); P = 64+8*((2*t+m) % 4)
            for x in range(8): e(f'v_cvt_pk_bf16_f32 v{P+x}, v{A+2*x}, v{A+2*x+1}')
            e('s_lshl_b32 s4, s26, 6', 's_lshl_b32 s5, s25, 2', 's_add_u32 s4, s4, s5', 's_lshl_b32 s5, s41, 1', 's_add_u32 s4, s4, s5', f's_add_u32 s4, s4, {m}', 's_mul_i32 s4, s4, 18')
            e('s_mul_i32 s5, s27, 6', 's_add_u32 s4, s4, s5', 's_add_u32 s4, s4, s39', f's_add_u32 s4, s4, {2*t}', 's_lshl_b32 s4, s4, 11', f's_add_u32 s4, s4, {PART}')
            e(f'buffer_store_dwordx4 {vr(P,4)}, v3, s[16:19], s4 offen', f'buffer_store_dwordx4 {vr(P+4,4)}, v3, s[16:19], s4 offen offset:1024', 's_nop 1')
    e('s_endpgm')

def prep(e):
    e(f's_sub_u32 s4, s2, {NATT+NG2}', 's_lshl_b32 s4, s4, 2', 's_add_u32 s4, s4, s24', 's_lshr_b32 s25, s4, 2', 's_and_b32 s26, s4, 3', 's_mul_i32 s26, s26, 9')
    srd(e, 12, 16, 576*1152)
    e('v_and_b32 v64, 31, v1', 'v_lshlrev_b32 v64, 1, v64', 's_lshl_b32 s4, s25, 6', 'v_add_u32 v64, s4, v64', 'v_lshrrev_b32 v65, 5, v1')
    e(f'v_mul_u32_u24 v66, {8*1152}, v65', 'v_add_u32 v66, v66, v64', f'v_mul_u32_u24 v67, {72*1152}, v65', 'v_add_u32 v67, v67, v64')
    e('s_waitcnt lgkmcnt(0)'); fix_srd(e, 12)
    for i in range(9):
        e(f's_add_u32 s27, s26, {i}', 's_cmp_ge_u32 s27, 32', 's_cselect_b64 s[30:31], -1, 0', f'v_cndmask_b32 v{68+i}, v66, v67, s[30:31]')
        e(f's_mul_i32 s28, s27, {18*1152}', 's_sub_u32 s29, s27, 32', f's_mul_i32 s29, s29, {144*1152}', f's_add_u32 s29, s29, {16*1152}')
        for j in range(8):
            e(f's_add_u32 s33, s28, {j*1152}', f's_add_u32 s34, s29, {(18*(j>>1)+(j&1))*1152}', 's_cmp_ge_u32 s27, 32', 's_cselect_b32 s33, s34, s33')
            e(f'buffer_load_ushort v{120+8*i+j}, v{68+i}, s[12:15], s33 offen')
        if i == 4: e('s_waitcnt vmcnt(20)')
    e('s_waitcnt vmcnt(0)')
    for i in range(9):
        for x in range(4): e(f'v_lshl_or_b32 v{80+4*i+x}, v{121+8*i+2*x}, 16, v{120+8*i+2*x}')
    e('s_mul_i32 s4, s25, 36', 's_add_u32 s4, s4, s26', 's_lshl_b32 s4, s4, 10', f's_add_u32 s4, s4, {WOF}')
    for i in range(9):
        e(f'buffer_store_dwordx4 {vr(80+4*i,4)}, v3, s[16:19], s4 offen', 's_add_u32 s4, s4, 1024')
    e('s_endpgm')

def k2(e):
    header(e, 'k2_kernel')
    e(f's_cmp_ge_u32 s2, {NATT+NG2+NPREP}', 's_cbranch_scc1 k2_end')
    e('v_lshrrev_b32 v2, 6, v0', 'v_and_b32 v1, 63, v0', 's_nop 0', 'v_readfirstlane_b32 s24, v2', 'v_lshlrev_b32 v3, 4, v1')
    srd(e, 16, 88, WSEND)
    e('s_waitcnt lgkmcnt(0)'); fix_srd(e, 16)
    e(f's_cmp_ge_u32 s2, {NATT+NG2}', 's_cbranch_scc1 k2_prep', f's_cmp_ge_u32 s2, {NATT}', 's_cbranch_scc1 k2_g2')
    attn(e)
    e.lab('k2_g2'); gemm2(e)
    e.lab('k2_prep'); prep(e)
    e.lab('k2_end'); e('s_endpgm')
```

```python
from common import *
LAUNCH = '; @launch kernel=k3_kernel grid=(288,1,1) block=(256,1,1) lds=65536'
NV = 256
def k3(e):
    header(e, 'k3_kernel')
    e('s_cmp_ge_u32 s2, 288', 's_cbranch_scc1 k3_end')
    e('s_and_b32 s4, s2, 7', 's_lshr_b32 s5, s2, 3', 's_and_b32 s6, s5, 3', 's_lshl_b32 s4, s4, 2', 's_add_u32 s25, s4, s6', 's_lshr_b32 s26, s5, 2')
    e('v_lshrrev_b32 v2, 6, v0', 'v_and_b32 v1, 63, v0', 's_nop 0', 'v_readfirstlane_b32 s24, v2', 'v_lshlrev_b32 v3, 4, v1')
    srd(e, 16, 88, WSEND); srd(e, 8, 72, 2048*576*2); srd(e, 12, 56, 1152)
    e('s_waitcnt lgkmcnt(0)')
    for d in (8, 12, 16): fix_srd(e, d)
    e('s_mul_i32 s27, s24, 9216', f's_mul_i32 s28, s25, {2*36*1024}', 's_add_u32 s28, s28, s27', f's_add_u32 s28, s28, {OF}')
    e(f's_mul_i32 s29, s26, {2*36*1024}', 's_add_u32 s29, s29, s27', f's_add_u32 s29, s29, {WOF}')
    e(f's_add_u32 s30, s28, {36*1024}', f's_add_u32 s31, s29, {36*1024}')
    FR = 64
    for i in range(9):
        for q, sb in enumerate((28, 30, 29, 31)):
            e(f'buffer_load_dwordx4 {vr(FR+16*i+4*q,4)}, v3, s[16:19], s{sb} offen')
        e('s_add_u32 s28, s28, 1024', 's_add_u32 s29, s29, 1024', 's_add_u32 s30, s30, 1024', 's_add_u32 s31, s31, 1024')
    e('s_lshr_b32 s33, s24, 1', 's_and_b32 s34, s24, 1', 's_lshl_b32 s35, s25, 1', 's_add_u32 s35, s35, s33', 's_lshl_b32 s36, s26, 1', 's_add_u32 s36, s36, s34')
    for r in range(64): e(f'v_mov_b32 v{r+208 if r < 48 else r-48+4}, 0') if False else None
    ACCS = [208, 224, 240, 44]
    for A in ACCS:
        for r in range(16): e(f'v_mov_b32 v{A+r}, 0')
    e('s_mul_i32 s37, s35, 18', 's_add_u32 s37, s37, s36', 's_lshl_b32 s37, s37, 11', f's_add_u32 s37, s37, {PART}')
    for sp in range(NSPLIT):
        e(f'buffer_load_dwordx4 {vr(4+8*sp,4)}, v3, s[16:19], s37 offen', f'buffer_load_dwordx4 {vr(8+8*sp,4)}, v3, s[16:19], s37 offen offset:1024')
        if sp < NSPLIT-1: e(f's_add_u32 s37, s37, {64*18*2048}')
    e('v_and_b32 v60, 31, v1', 'v_lshlrev_b32 v60, 2, v60', 's_lshl_b32 s38, s35, 7', f's_add_u32 s38, s38, {GT}', 'buffer_load_dword v61, v60, s[16:19], s38 offen')
    for i in range(9):
        e(f's_waitcnt vmcnt({min(63, 4*(8-i)+11)})')
        F = FR+16*i
        for m in range(2):
            for n in range(2):
                e(f'v_mfma_f32_32x32x16_bf16 {vr(ACCS[2*m+n],16)}, {vr(F+8+4*n,4)}, {vr(F+4*m,4)}, {vr(ACCS[2*m+n],16)}')
    e('s_nop 7', 'v_lshrrev_b32 v60, 5, v1', 'v_lshlrev_b32 v60, 3, v60', 's_lshl_b32 s38, s36, 6')
    for g in range(4): e(f'buffer_load_dwordx2 v[{64+2*g}:{65+2*g}], v60, s[12:15], s38 offen offset:{16*g}')
    e('s_nop 15', 's_nop 7')
    e('s_lshl_b32 s39, s24, 12', 'v_add_u32 v62, s39, v3')
    for t in range(4):
        for g in range(4): e(f'ds_write_b128 v62, {vr(ACCS[t]+4*g,4)} offset:{16384*t+1024*g}')
    e('s_waitcnt lgkmcnt(0)', 's_barrier')
    e('s_lshl_b32 s39, s24, 14', 'v_add_u32 v62, s39, v3')
    for w in range(4):
        for g in range(4): e(f'ds_read_b128 {vr(80+16*w+4*g,4)}, v62 offset:{4096*w+1024*g}')
    e('s_waitcnt vmcnt(0)')
    for half in range(2):
        for x in range(4):
            i = 8*half+2*x
            g, j = i//4, i % 4
            e(f'v_lshlrev_b32 v{144+i}, 16, v{64+2*g+j//2}', f'v_and_b32 v{145+i}, 0xffff0000, v{64+2*g+j//2}')
            for sp in range(NSPLIT):
                r = 4+8*sp+4*half+x
                e(f'v_lshlrev_b32 v160, 16, v{r}', f'v_and_b32 v161, 0xffff0000, v{r}', f'v_add_f32 v{144+i}, v{144+i}, v160', f'v_add_f32 v{145+i}, v{145+i}, v161')
    e('s_waitcnt lgkmcnt(0)')
    e('v_sub_f32 v63, 1.0, v61')
    for i in range(16):
        e(f'v_add_f32 v{80+i}, v{80+i}, v{96+i}', f'v_add_f32 v{112+i}, v{112+i}, v{128+i}', f'v_add_f32 v{80+i}, v{80+i}, v{112+i}')
        e(f'v_mul_f32 v{144+i}, v63, v{144+i}', f'v_fma_f32 v{80+i}, v61, v{80+i}, v{144+i}')
    pack_swap(e, 80, 96)
    e('v_and_b32 v60, 31, v1', 'v_mul_u32_u24 v60, 1152, v60', 'v_lshrrev_b32 v62, 5, v1', 'v_lshl_add_u32 v60, v62, 4, v60')
    e(f's_mul_i32 s38, s35, {32*1152}', 's_lshl_b32 s39, s36, 6', 's_add_u32 s38, s38, s39')
    e('buffer_store_dwordx4 v[96:99], v60, s[8:11], s38 offen', 'buffer_store_dwordx4 v[100:103], v60, s[8:11], s38 offen offset:32')
    e.lab('k3_end'); e('s_endpgm')
```

```python
NSPLIT = 5
HF = 0
QF = HF + 64*288*1024
KF = QF + 32*64*1024
Q2 = KF + 32*64*1024
K2 = Q2 + 32*2048*4
VF = K2 + 32*2048*4
GT = VF + 32*128*1024
OF = GT + 8192
WOF = OF + 64*36*1024
PART = WOF + 18*36*1024
WSEND = PART + NSPLIT*64*18*2048
```

```python
import sys, importlib
from common import *
import k1
NAME='gated_mix__softmax_full_mha__dense_activation_squared_relu__prompt'
parts = sys.argv[1].split(',') if len(sys.argv) > 1 else ['k1', 'k2', 'k3']
ref = open(f'cdna_kernels/{NAME}.s.ref').read().split('\n')
hdr = [l for l in ref if l.startswith('; ') and 'offset' in l[:12] or l.startswith('; Kernarg')]
e = E()
launch = {'k1': '; @launch kernel=k1_kernel grid=(256,1,1) block=(512,1,1) lds=155648'}
desc = ''
k1.k1(e); desc += descr('k1_kernel', 240)
if 'k2' in parts:
    import k2
    launch['k2'] = k2.LAUNCH; k2.k2(e); desc += descr('k2_kernel', k2.NV)
if 'k3' in parts:
    import k3
    launch['k3'] = k3.LAUNCH; k3.k3(e); desc += descr('k3_kernel', k3.NV)
out = '\n'.join(hdr) + '\n' + '\n'.join(launch[k] for k in ('k1', 'k2', 'k3') if k in launch) + '\n.amdgcn_target "amdgcn-amd-amdhsa--gfx950"\n' + e.txt() + desc
open(sys.argv[2] if len(sys.argv) > 2 else f'cdna_kernels/{NAME}.s', 'w').write(out)
```

```python
import re
from layout import *
class E:
    def __init__(s): s.l = []; s.uid = 0
    def __call__(s, *a):
        for x in a:
            m = re.match(r's_cselect_b32 (s\d+), (\w+), (\w+)$', x)
            if m and all(re.match(r'(0x[0-9a-f]+|\d+)$', g) and int(g, 0) > 64 for g in m.groups()[1:]):
                s.l.append(f'    s_mov_b32 {m.group(1)}, {m.group(3)}'); x = f's_cselect_b32 {m.group(1)}, {m.group(2)}, {m.group(1)}'
            s.l.append('    ' + x)
    def lab(s, n): s.l.append(n + ':')
    def u(s, p='L'): s.uid += 1; return f'{p}_{s.uid}'
    def txt(s): return '\n'.join(s.l) + '\n'
def vr(b, n): return f'v[{b}:{b+n-1}]' if n > 1 else f'v{b}'
def sr(b, n): return f's[{b}:{b+n-1}]' if n > 1 else f's{b}'
def srd(e, d, karg_off, size, tmp=4):
    e(f's_load_dwordx2 {sr(d,2)}, s[0:1], {karg_off}')
    e(f's_mov_b32 s{d+2}, {size}', f's_mov_b32 s{d+3}, 0x00020000')
def fix_srd(e, d): e(f's_and_b32 s{d+1}, s{d+1}, 0xffff')
def mfma(e, acc, a, b, c=None):
    e(f'v_mfma_f32_32x32x16_bf16 {vr(acc,16)}, {vr(a,4)}, {vr(b,4)}, {vr(acc,16) if c is None else c}')
def header(e, name):
    e.l += ['.text', f'.globl {name}', '.p2align 8', f'.type {name},@function']; e.lab(name)
def descr(name, vg, sg=96, lds=0):
    return f'''.section .rodata,"a"
.p2align 6
.amdhsa_kernel {name}
  .amdhsa_next_free_vgpr {vg}
  .amdhsa_next_free_sgpr {sg}
  .amdhsa_accum_offset {(vg+3)//4*4}
  .amdhsa_group_segment_fixed_size 0
  .amdhsa_kernarg_size 96
  .amdhsa_user_sgpr_count 2
  .amdhsa_user_sgpr_kernarg_segment_ptr 1
  .amdhsa_system_sgpr_workgroup_id_x 1
.end_amdhsa_kernel
'''
def pack_swap(e, src, dst):
    for g in range(4):
        for x in range(2):
            e(f'v_cvt_pk_bf16_f32 v{dst+2*g+x}, v{src+4*g+2*x}, v{src+4*g+2*x+1}')
    e('s_nop 1')
    for p in range(2):
        for x in range(2):
            e(f'v_permlane32_swap_b32 v{dst+4*p+x}, v{dst+4*p+2+x}')

import os
PROF = os.environ.get('PROF', '') != ''
PK = os.environ.get('PK', '1')
def prof_start(e):
    if PROF: e('s_memtime s[80:81]', 's_memrealtime s[74:75]', 's_load_dwordx2 s[84:85], s[0:1], 80')
def prof_mark(e, k):
    if PROF: e(f's_memtime s[{86+2*k}:{87+2*k}]')
def prof_end(e, idx_sgpr, nmarks=0, stride=1):
    if PROF:
        sk = e.u('pe')
        e('s_memtime s[82:83]', 's_waitcnt lgkmcnt(0)', 's_cmp_lg_u32 s24, 0', f's_cbranch_scc1 {sk}', f's_cmp_ge_u32 {idx_sgpr}, {64//stride}', f's_cbranch_scc1 {sk}')
        e(f's_mul_i32 s79, {idx_sgpr}, {4*stride}', 'v_mov_b32 v3, s79')
        for k in range(nmarks):
            e(f's_sub_u32 s78, s{86+2*k}, s80', 'v_mov_b32 v2, s78', f'global_store_dword v3, v2, s[84:85] offset:{4*(k+1)}')
        e('s_sub_u32 s78, s82, s80', 'v_mov_b32 v2, s78', 'global_store_dword v3, v2, s[84:85]')
        e('s_memrealtime s[72:73]', 's_waitcnt lgkmcnt(0)', 's_sub_u32 s78, s72, s74', 'v_mov_b32 v2, s78', 'v_mov_b32 v3, 252', 'global_store_dword v3, v2, s[84:85]')
        e.lab(sk)

TL = os.environ.get('TL', '') != ''
def tl_start(e):
    if TL: e('s_memrealtime s[90:91]', 's_load_dwordx2 s[92:93], s[0:1], 88')
def tl_end(e, k):
    if TL:
        sk = e.u('tl')
        e('s_waitcnt vmcnt(0)', 's_memrealtime s[94:95]', 's_waitcnt lgkmcnt(0)', 's_cmp_lg_u32 s24, 0', f's_cbranch_scc1 {sk}')
        e('s_lshl_b32 s89, s2, 3', f's_add_u32 s89, s89, {(128<<20) + k*65536}', 'v_mov_b32 v3, s89', 'v_mov_b32 v4, s90', 'v_mov_b32 v5, s94', 's_mov_b64 exec, 1', 'global_store_dwordx2 v3, v[4:5], s[92:93]')
        e.lab(sk)
```

```python
from common import *
QSC = '0x3eae1b5d'
import struct
def fbits(x): return '0x%08x' % struct.unpack('<I', struct.pack('<f', x))[0]
QSC = fbits(18**-0.5 * 1.4426950408889634)
ACC = 128
SLOT = 30720; NS = 5; GOFF = SLOT*NS
VXO, VWO, VSO, VXR, VWR, VSP, VG, VL16 = 4, 6, 8, 10, 12, 13, 14, 15
LP = 16
SETA, SETB = 24, 48
def k1_role(e, role):
    tiles = {'ffn': ['ffn']*3, 'qkl': ['qk']*3, 'qkg': ['qk']*3, 'mix': ['qk', 'v', 'v'], 'vl': ['v']*3}[role]
    sp = {'qkl': 'qkl', 'qkg': 'gate', 'vl': 'vl'}.get(role)
    RS = 384; wstride = 9216 if role == 'ffn' else 3456
    spd = sp in ('qkl', 'vl')
    for i in range(2):
        e(f's_add_u32 s4, s24, {8*i}', 's_lshl_b32 s4, s4, 6', 'v_add_u32 v64, s4, v1')
        e('s_mov_b32 s5, 2731', 'v_mul_lo_u32 v65, v64, s5', 'v_lshrrev_b32 v65, 16, v65')
        e('v_mul_u32_u24 v66, 24, v65', 'v_sub_u32 v66, v64, v66')
        e('v_lshlrev_b32 v67, 1, v65', 'v_and_b32 v67, 4, v67', 'v_xor_b32 v66, v66, v67')
        if role == 'ffn':
            e('v_lshlrev_b32 v66, 4, v66', 'v_mul_u32_u24 v65, 9216, v65', 's_mul_i32 s4, s26, 384', f'v_add3_u32 v{VWO+i}, v65, v66, s4')
        else:
            e('v_lshrrev_b32 v67, 1, v66', 'v_mul_u32_u24 v67, 36, v67', 'v_and_b32 v66, 1, v66', 'v_lshl_add_u32 v66, v66, 4, v67')
            e('v_mul_u32_u24 v65, 3456, v65', 's_mul_i32 s4, s31, 72', f'v_add3_u32 v{VWO+i}, v65, v66, s4')
    if spd:
        e('s_lshl_b32 s4, s24, 2', 'v_lshrrev_b32 v64, 4, v1', 'v_add_u32 v64, s4, v64', 'v_mul_u32_u24 v64, 3456, v64')
        e('v_and_b32 v65, 15, v1', 'v_mul_u32_u24 v65, 36, v65', 's_mul_i32 s4, s36, 576', 's_add_u32 s4, s4, 32', f'v_add3_u32 v{VSO}, v64, v65, s4')
    def dma_list():
        L = []
        for i in range(2): L.append([f's_add_u32 m0, s30, s33' if i == 0 else f's_add_u32 m0, m0, 1024', 's_nop 0', f'buffer_load_dwordx4 v{VXO+i}, s[8:11], s28 offen lds'])
        L.append(['s_add_u32 m0, s30, s34', 's_nop 0', f'buffer_load_dwordx4 v{VWO}, s[12:15], s29 offen lds'])
        sk = e.u('w2')
        L.append(['s_cmp_ge_u32 s24, 4', f's_cbranch_scc1 {sk}', 's_add_u32 m0, m0, 8192', 's_nop 0', f'buffer_load_dwordx4 v{VWO+1}, s[12:15], s29 offen lds', ('lab', sk)])
        if spd: L.append(['s_add_u32 m0, s30, s37', 's_nop 0', f'buffer_load_dword v{VSO}, s[12:15], s29 offen lds'])
        L[-1] = L[-1] + ['s_add_u32 s28, s28, 64', f's_add_u32 s29, s29, {32*wstride}', 's_add_u32 s38, s38, 1', 's_cmp_ge_u32 s38, 18', 's_cselect_b32 s28, 0x40000000, s28', 's_cselect_b32 s29, 0x40000000, s29',
                         f's_add_u32 s30, s30, {SLOT}', f's_cmp_eq_u32 s30, {SLOT*NS}', 's_cselect_b32 s30, 0, s30']
        return L
    def em(d):
        for x in d:
            if isinstance(x, tuple): e.lab(x[1])
            else: e(x)
    PER = 4 if spd else 3
    e('s_lshl_b32 s33, s24, 11', 's_lshl_b32 s34, s24, 10', 's_add_u32 s34, s34, 16384', 's_lshl_b32 s37, s24, 8', f's_add_u32 s37, s37, {16384+12288}', 's_mov_b32 s28, 0', 's_mov_b32 s29, 0', 's_mov_b32 s30, 0', 's_mov_b32 s38, 0')
    if role == 'ffn':
        e('v_lshrrev_b32 v64, 5, v1', 'v_lshlrev_b32 v64, 3, v64', 's_mul_i32 s4, s26, 384', 's_lshl_b32 s5, s39, 6', 's_add_u32 s4, s4, s5', 'v_add_u32 v64, s4, v64')
        for t in range(3):
            for g in range(4): e(f'buffer_load_dwordx2 v[{72+8*t+2*g}:{73+8*t+2*g}], v64, s[20:23], 0 offen offset:{128*t+16*g}')
    if sp == 'gate':
        e('s_cmp_lg_u32 s24, 0', 's_cbranch_scc1 k1_nog', f's_mov_b32 m0, {GOFF}', 'v_lshlrev_b32 v64, 4, v1', 'buffer_load_dwordx4 v64, s[20:23], 0 offen lds',
          f's_mov_b32 m0, {GOFF+1024}', 'v_add_u32 v64, 1024, v64', 'buffer_load_dwordx4 v64, s[20:23], 0 offen lds')
        e.lab('k1_nog')
        e('v_lshrrev_b32 v64, 5, v1', 'v_lshlrev_b32 v64, 4, v64', f'v_add_u32 v{VG}, {GOFF}, v64')
    for st in range(NS-1):
        for d in dma_list(): em(d)
    NPF = 0
    if role != 'ffn' and not os.environ.get('NOPF'):
        NPF = 1
        e('s_lshr_b32 s4, s2, 3', 's_mul_i32 s4, s4, 486', 'v_add_u32 v64, s4, v0', 'v_lshlrev_b32 v64, 7, v64', 'v_mov_b32 v65, 0x7f000000', 'v_cmp_gt_u32 vcc, 486, v0')
        e('v_cndmask_b32 v64, v65, v64, vcc', 'buffer_load_dword v97, v64, s[12:15], 0 offen')
    e('v_and_b32 v64, 15, v1', 'v_lshrrev_b32 v65, 5, v1', 'v_lshrrev_b32 v66, 2, v64', 'v_lshl_add_u32 v66, v65, 3, v66')
    e('v_bfe_u32 v67, v1, 4, 1', 'v_lshlrev_b32 v67, 5, v67', 'v_and_b32 v68, 3, v64', 'v_lshl_add_u32 v67, v68, 3, v67')
    e('v_mul_u32_u24 v68, 64, v66', f'v_add_u32 v{LP+3}, v68, v67', f'v_add_u32 v{LP+3}, {16384+12288}, v{LP+3}')
    e(f'v_mul_u32_u24 v66, {RS}, v66', 'v_add_u32 v66, v66, v67', 'v_bfe_u32 v67, v1, 3, 1', 'v_xor_b32 v67, s39, v67', 'v_lshl_add_u32 v66, v67, 6, v66', f'v_add_u32 v{LP+2}, 16384, v66')
    for s in range(2):
        e('v_and_b32 v64, 31, v1', 'v_bfe_u32 v65, v1, 2, 2', 'v_lshrrev_b32 v66, 5, v1', f'v_add_u32 v66, {2*s}, v66', 'v_xor_b32 v65, v65, v66')
        e('v_lshlrev_b32 v64, 6, v64', 'v_lshl_add_u32 v64, v65, 4, v64', 's_lshr_b32 s4, s24, 1', 's_lshl_b32 s4, s4, 12', f'v_add_u32 v{LP+s}, s4, v64')
    nacc = 6 + (1 if sp else 0)
    if role != 'ffn':
        for r in range(16*nacc): e(f'v_mov_b32 v{ACC+r}, 0')
    e(f's_waitcnt vmcnt({PER*(NS-2)+NPF})')
    if role == 'ffn':
        for t in range(3):
            for g in range(4):
                for x in range(2):
                    r = 72+8*t+2*g+x
                    for m in range(2): e(f'v_lshlrev_b32 v{ACC+16*(2*t+m)+4*g+2*x}, 16, v{r}', f'v_and_b32 v{ACC+16*(2*t+m)+4*g+2*x+1}, 0xffff0000, v{r}')
    def addr():
        e(f'v_add_u32 v{VXR}, s40, v{LP}', f'v_add_u32 v{VXR+1}, s40, v{LP+1}', f'v_add_u32 v{VWR}, s40, v{LP+2}')
        if spd: e(f'v_add_u32 v{VSP}, s40, v{LP+3}')
    def reads(S, s):
        L = []
        for m in range(2): L.append(f'ds_read_b128 {vr(S+4*m,4)}, v{VXR+s} offset:{2048*m}')
        if not os.environ.get('NORD'):
            for t in range(3):
                for kk in range(2): L.append(f'ds_read_b64_tr_b16 {vr(S+8+4*t+2*kk,2)}, v{VWR} offset:{(16*s+4*kk)*RS+128*t}')
            if spd:
                for kk in range(2): L.append(f'ds_read_b64_tr_b16 {vr(S+20+2*kk,2)}, v{VSP} offset:{(16*s+4*kk)*64}')
            if sp == 'gate': L.append(f'ds_read_b128 {vr(S+20,4)}, v{VG} offset:{32*s}')
        return L
    def mfmas(S):
        L = []
        for t in range(3):
            for m in range(2):
                a, b = (S+4*m, S+8+4*t) if tiles[t] == 'v' else (S+8+4*t, S+4*m)
                L.append(f'v_mfma_f32_32x32x16_bf16 {vr(ACC+16*(2*t+m),16)}, {vr(a,4)}, {vr(b,4)}, {vr(ACC+16*(2*t+m),16)}')
        if sp:
            for wn in range(2):
                pass
        return L
    def special(S):
        if not sp: return
        l0, l1 = e.u('sp0'), e.u('sp1')
        e('s_cmp_eq_u32 s39, 0', f's_cbranch_scc1 {l0}')
        for wn in (1, 0):
            if wn == 0: e.lab(l0)
            a, b = (S+4*wn, S+20) if sp == 'vl' else (S+20, S+4*wn)
            e(f'v_mfma_f32_32x32x16_bf16 {vr(ACC+96,16)}, {vr(a,4)}, {vr(b,4)}, {vr(ACC+96,16)}')
            if wn == 1: e(f's_branch {l1}')
        e.lab(l1)
    def half(S, R, D):
        M = [] if os.environ.get('NOMFMA') else mfmas(S)
        R = list(R); D = list(D)
        for x in R[:4]: e(x)
        R = R[4:]
        for i in range(6):
            if M: e(M[i])
            for x in R[:2]: e(x)
            R = R[2:]
            if D: em(D.pop(0))
        for x in R: e(x)
        for d in D: em(d)
        if not os.environ.get('NOMFMA'): special(S)
    e('s_barrier', 's_mov_b32 s40, 0')
    addr()
    for x in reads(SETA, 0): e(x)
    e('s_mov_b32 s27, 0')
    lp = e.u('k1loop'); e.lab(lp)
    e('s_waitcnt lgkmcnt(0)')
    half(SETA, reads(SETB, 1), [] if os.environ.get('NODMA') else dma_list())
    e('s_waitcnt lgkmcnt(0)', f's_waitcnt vmcnt({PER*(NS-2)})', 's_barrier')
    e(f's_add_u32 s40, s40, {SLOT}', f's_cmp_eq_u32 s40, {SLOT*NS}', 's_cselect_b32 s40, 0, s40')
    addr()
    if sp == 'gate': e(f'v_add_u32 v{VG}, 64, v{VG}')
    half(SETB, reads(SETA, 0), [])
    e('s_add_u32 s27, s27, 1', 's_cmp_lt_u32 s27, 18', f's_cbranch_scc1 {lp}')
    e('s_waitcnt lgkmcnt(0)', 's_nop 15', 's_nop 7')
    prof_mark(e, 0)
    items = [(tiles[t], ACC+16*(2*t+m), t, m) for t in range(3) for m in range(2)]
    if sp: items.append((sp, ACC+96, 0, 0))
    for k, (ty, A, t, m) in enumerate(items):
        P = 64 + 8*(k % 4)
        if ty == 'ffn':
            for r in range(16): e(f'v_max_f32 v{96+r}, 0, v{A+r}')
            for r in range(16): e(f'v_mul_f32 v{A+r}, v{96+r}, v{96+r}')
            pack_swap(e, A, P)
            e(f's_add_u32 s4, s41, {m}', f's_mul_i32 s4, s4, {288*1024}', f's_mul_i32 s5, s26, {12*1024}', 's_add_u32 s4, s4, s5', 's_lshl_b32 s5, s39, 11', 's_add_u32 s4, s4, s5', f's_add_u32 s4, s4, {HF+4*t*1024}')
            e(f'buffer_store_dwordx4 {vr(P,4)}, v{VL16}, s[16:19], s4 offen {os.environ.get("HST","sc0 sc1")}', f'buffer_store_dwordx4 {vr(P+4,4)}, v{VL16}, s[16:19], s4 offen offset:1024 {os.environ.get("HST","sc0 sc1")}')
        elif ty == 'qk':
            e(f's_add_u32 s5, s31, {2*t}', 's_add_u32 s5, s5, s39', 's_cmp_lt_u32 s5, 16', f's_cselect_b32 s6, {QSC}, 1.0')
            for r in range(16): e(f'v_mul_f32 v{A+r}, s6, v{A+r}')
            pack_swap(e, A, P)
            e(f's_add_u32 s4, s41, {m}', f's_cselect_b32 s7, 0, 0', 's_cmp_lt_u32 s5, 16', f's_cselect_b32 s6, 1024, {KVT}', 's_mul_i32 s4, s4, s6', f's_cselect_b32 s6, 65536, {KVH}', f's_cselect_b32 s7, {QF}, {KV-32*KVH}',
              's_mul_i32 s5, s5, s6', 's_lshl_b32 s5, s5, 1', 's_add_u32 s4, s4, s5', 's_add_u32 s4, s4, s7', 's_add_u32 s5, s4, s6')
            e(f'buffer_store_dwordx4 {vr(P,4)}, v{VL16}, s[16:19], s4 offen {os.environ.get("QST","sc0 sc1")}', f'buffer_store_dwordx4 {vr(P+4,4)}, v{VL16}, s[16:19], s5 offen {os.environ.get("QST","sc0 sc1")}')
        elif ty in ('v', 'vl'):
            for g in range(4):
                for x in range(2): e(f'v_cvt_pk_bf16_f32 v{P+2*g+x}, v{A+4*g+2*x}, v{A+4*g+2*x+1}')
            if ty == 'v':
                e('v_bfe_u32 v100, v1, 4, 1', f'v_mul_u32_u24 v100, {KVH}, v100', 'v_and_b32 v101, 47, v1', 'v_lshl_add_u32 v100, v101, 4, v100')
                e(f's_add_u32 s5, s31, {2*t}', 's_add_u32 s5, s5, s39', 's_sub_u32 s5, s5, 32', f's_mul_i32 s5, s5, {2*KVH}', f's_add_u32 s4, s41, {m}', f's_mul_i32 s4, s4, {KVT}')
            else:
                e('v_bfe_u32 v100, v1, 1, 4', f'v_mul_u32_u24 v100, {KVH}, v100', 'v_and_b32 v101, 33, v1', 'v_add_u32 v101, 16, v101', 'v_lshl_add_u32 v100, v101, 4, v100')
                e('s_sub_u32 s5, s36, 4', f's_mul_i32 s5, s5, {16*KVH}', f's_mul_i32 s4, s32, {KVT}')
            e('s_add_u32 s4, s4, s5', f's_add_u32 s4, s4, {KV+1024}')
            e(f'buffer_store_dwordx4 {vr(P,4)}, v100, s[16:19], s4 offen {os.environ.get("QST","sc0 sc1")}', f'buffer_store_dwordx4 {vr(P+4,4)}, v100, s[16:19], s4 offen offset:1024 {os.environ.get("QST","sc0 sc1")}')
            if ty == 'vl':
                e('v_bfe_u32 v102, v1, 1, 4', f'v_mul_u32_u24 v102, {KVH}, v102', 'v_and_b32 v101, 32, v1', 'v_add_u32 v101, 18, v101', 'v_lshl_add_u32 v102, v101, 4, v102')
                for x in range(4): e(f'v_mov_b32 v{104+x}, 0x3f803f80')
                e('buffer_store_dwordx4 v[104:107], v102, s[16:19], s4 offen', 'buffer_store_dwordx4 v[104:107], v102, s[16:19], s4 offen offset:1024')
        elif ty == 'qkl':
            e('s_cmp_lt_u32 s36, 2', f's_cselect_b32 s6, {QSC}, 1.0')
            for r in range(16): e(f'v_mul_f32 v{A+r}, s6, v{A+r}')
            for g in range(4):
                for x in range(2): e(f'v_cvt_pk_bf16_f32 v{P+2*g+x}, v{A+4*g+2*x}, v{A+4*g+2*x+1}')
            e('s_cmp_lt_u32 s36, 2', f's_cselect_b32 s7, 8192, {KVH}', f's_cselect_b32 s5, 128, {KVT}', f's_cselect_b32 s6, {Q2}, {KV-32*KVH+3072}', 's_mul_i32 s4, s32, s5', 's_add_u32 s4, s4, s6', 's_mul_i32 s5, s36, s7', 's_lshl_b32 s5, s5, 4', 's_add_u32 s4, s4, s5')
            e('v_lshrrev_b32 v100, 5, v1', 's_lshl_b32 s5, s7, 1', 'v_mul_lo_u32 v100, v100, s5', 'v_and_b32 v101, 31, v1', 'v_lshl_add_u32 v100, v101, 2, v100')
            for g in range(4):
                for x in range(2):
                    e(f's_mul_i32 s5, s7, {4*g+x}', 's_add_u32 s5, s5, s4', f'buffer_store_dword v{P+2*g+x}, v100, s[16:19], s5 offen')
        elif ty == 'gate':
            e(f'v_mul_f32 v100, 0xbfb8aa3b, v{A}', 'v_exp_f32 v100, v100', 's_nop 0', 'v_add_f32 v100, 1.0, v100', 'v_rcp_f32 v100, v100')
            e('v_and_b32 v101, 31, v1', 'v_lshlrev_b32 v101, 2, v101', 's_lshl_b32 s4, s32, 7', f's_add_u32 s4, s4, {GT}', 's_nop 0', 'buffer_store_dword v100, v101, s[16:19], s4 offen')
        e('s_nop 1')
    e('s_waitcnt vmcnt(0)') if PROF else None
    if PROF: e('s_lshl_b32 s77, s25, 6', 's_add_u32 s77, s77, s26', 's_lshr_b32 s77, s77, 0')
    e('s_mov_b32 s77, s2') if PROF else None
    if PROF: e('s_waitcnt lgkmcnt(0)', 's_lshl_b32 s76, s76, 24', 's_add_u32 s80, s80, s76', 's_sub_u32 s80, s80, s76', 's_sub_u32 s80, s80, s76')
    prof_end(e, 's77', 1, 2) if os.environ.get('PK','1')=='1' else None
    tl_end(e, 0)
    e('s_endpgm')

def k1(e):
    header(e, 'k1_kernel')
    e('s_cmp_ge_u32 s2, 256', 's_cbranch_scc1 k1_end')
    e('s_and_b32 s4, s2, 7', 's_lshr_b32 s5, s2, 3')
    e('s_and_b32 s6, s4, 1', 's_lshl_b32 s6, s6, 2', 's_and_b32 s7, s5, 3', 's_add_u32 s25, s6, s7')
    e('s_lshr_b32 s6, s4, 1', 's_lshl_b32 s6, s6, 3', 's_lshr_b32 s7, s5, 2', 's_add_u32 s26, s6, s7')
    if os.environ.get('SAME'): e('s_mov_b32 s25, 0', 's_and_b32 s26, s26, 1')
    if PROF: e('s_getreg_b32 s76, hwreg(HW_REG_XCC_ID)', 's_and_b32 s76, s76, 15')
    e('v_lshrrev_b32 v2, 6, v0', 'v_and_b32 v1, 63, v0', 's_nop 0', 'v_readfirstlane_b32 s24, v2', f'v_lshlrev_b32 v{VL16}, 4, v1')
    prof_start(e); tl_start(e)
    srd(e, 16, 88, WSEND)
    e('s_lshl_b32 s32, s25, 3', 's_add_u32 s32, s32, s24')
    e('s_cmp_ge_u32 s26, 24', 's_cbranch_scc1 k1_qkv')
    srd(e, 8, 0, 2359296); srd(e, 12, 32, 5308416); srd(e, 20, 40, 9216)
    e('s_branch k1_go')
    e.lab('k1_qkv')
    srd(e, 8, 0, 2359296); srd(e, 12, 8, 1990656); srd(e, 20, 64, 1152)
    e.lab('k1_go')
    e('s_and_b32 s39, s24, 1', 's_lshr_b32 s41, s24, 1', 's_lshl_b32 s41, s41, 1', 's_lshl_b32 s4, s25, 3', 's_add_u32 s41, s41, s4')
    for i in range(2):
        e('v_lshrrev_b32 v64, 2, v1', f'v_add_u32 v64, {16*i}, v64', 'v_bfe_u32 v65, v64, 2, 2', 'v_and_b32 v66, 3, v1', 'v_xor_b32 v65, v65, v66')
        e('s_lshl_b32 s4, s32, 5', 'v_add_u32 v64, s4, v64', 'v_mul_u32_u24 v64, 1152, v64', f'v_lshl_add_u32 v{VXO+i}, v65, 4, v64')
    e('s_waitcnt lgkmcnt(0)')
    for d in (8, 12, 16, 20): fix_srd(e, d)
    e('s_sub_u32 s35, s26, 24', 's_mul_i32 s31, s35, 6')
    e('s_sub_u32 s4, s35, 2', 's_cmp_lt_u32 s35, 4', 's_cselect_b32 s36, s35, s4')
    e('s_cmp_lt_u32 s26, 24', 's_cbranch_scc1 k1_ffn', 's_cmp_lt_u32 s26, 28', 's_cbranch_scc1 k1_qkl', 's_cmp_eq_u32 s26, 28', 's_cbranch_scc1 k1_qkg', 's_cmp_eq_u32 s26, 29', 's_cbranch_scc1 k1_mix', 's_branch k1_vl')
    for r in ('ffn', 'qkl', 'qkg', 'mix', 'vl'):
        e.lab('k1_' + r); k1_role(e, r)
    e.lab('k1_end'); e('s_endpgm')
```

```python
from common import *
import os
NATT, NG2, NPREP = 256, 240, 9
LAUNCH = f'; @launch kernel=k2_kernel grid=({NATT+NG2+NPREP},1,1) block=(256,1,1) lds=61440'
NV = 256
def em(e, d):
    for x in d:
        if isinstance(x, tuple): e.lab(x[1])
        else: e(x)

def attn(e):
    TS = 3328; ST = 4*TS; NSL = 4
    S = [[0, 16], [32, 48]]
    B = 12
    S = [[B, B+16], [B+32, B+48]]
    O = [76, 92]; P = [108, 116]; M = [124, 140]; Q = [156, 164]; K = [172, 180]; V = [188, 196]
    T = 204
    e('s_and_b32 s4, s2, 7', 's_lshr_b32 s5, s2, 3', 's_lshl_b32 s4, s4, 2', 's_and_b32 s6, s5, 3', 's_add_u32 s25, s4, s6', 's_lshr_b32 s26, s5, 2')
    e('s_lshl_b32 s27, s26, 3', 's_lshl_b32 s4, s24, 1', 's_add_u32 s27, s27, s4')
    e('v_and_b32 v4, 31, v1', 'v_lshlrev_b32 v4, 2, v4')
    e('v_lshlrev_b32 v5, 2, v1')
    e('s_lshl_b32 s4, s25, 16', 's_lshl_b32 s5, s27, 10', 's_add_u32 s4, s4, s5', f's_add_u32 s4, s4, {QF}')
    e('s_lshl_b32 s6, s25, 13', 's_lshl_b32 s5, s27, 7', 's_add_u32 s6, s6, s5', f's_add_u32 s6, s6, {Q2}')
    for q in range(2):
        e(f'buffer_load_dwordx4 {vr(Q[q],4)}, v3, s[16:19], s4 offen offset:{1024*q}', f'buffer_load_dword v{Q[q]+4}, v4, s[16:19], s6 offen offset:{128*q}')
        for r in range(1, 4): e(f'v_mov_b32 v{Q[q]+4+r}, 0', f'v_mov_b32 v{K[q]+4+r}, 0')
        for r in range(16): e(f'v_mov_b32 v{M[q]+r}, 0')
    e(f's_mul_i32 s28, s25, {KVH}', f's_mul_i32 s31, s24, {TS}', 's_add_u32 s28, s28, s31', f's_add_u32 s28, s28, {KV}')
    e('s_mov_b32 s44, 0', 's_mov_b32 s45, 0x07060302')
    e.lab('att_pass')
    e('s_mov_b32 s33, s28')
    def dma(sl):
        return [f's_add_u32 m0, s31, {ST*sl}', 'buffer_load_dwordx4 v3, s[16:19], s33 offen lds', 'buffer_load_dwordx4 v3, s[16:19], s33 offen offset:1024 lds', 'buffer_load_dwordx4 v3, s[16:19], s33 offen offset:2048 lds',
                'buffer_load_dword v4, s[16:19], s33 offen offset:3072 lds', f's_add_u32 s33, s33, {ST}']
    for st in range(3):
        d = dma(st); e(d[0], 's_nop 0', *d[1:])
    for q in range(2):
        for r in range(16): e(f'v_mov_b32 v{O[q]+r}, 0')
        for r in range(8): e(f'v_mov_b32 v{P[q]+r}, 0')
    for r in range(8): e(f'v_mov_b32 v{V[1]+r}, 0')
    def rdK(par, tl): return [f'ds_read_b128 {vr(K[par],4)}, v3 offset:{TS*tl}', f'ds_read_b32 v{K[par]+4}, v5 offset:{TS*tl+3072}']
    def rdV(par, tl): return [f'ds_read_b128 {vr(V[par],4)}, v3 offset:{TS*tl+1024}', f'ds_read_b128 {vr(V[par]+4,4)}, v3 offset:{TS*tl+2048}']
    def qk(par, q, left):
        c = vr(S[par][q], 16) if left else vr(M[q], 16)
        if left and os.environ.get('X8', '0') == '1':
            return f'v_mfma_f32_32x32x8bf16_1k {vr(S[par][q],16)}, {vr(K[par]+4,2)}, {vr(Q[q]+4,2)}, {c}'
        return f'v_mfma_f32_32x32x16_bf16 {vr(S[par][q],16)}, {vr(K[par]+4*left,4)}, {vr(Q[q]+4*left,4)}, {c}'
    def pv(par, q, s): return f'v_mfma_f32_32x32x16_bf16 {vr(O[q],16)}, {vr(V[par]+4*s,4)}, {vr(P[q]+4*s,4)}, {vr(O[q],16)}'
    def perm(par, q, r0): return [f'v_perm_b32 v{P[q]+r0//2+x}, v{S[par][q]+r0+2*x+1}, v{S[par][q]+r0+2*x}, s45' for x in range(2)]
    for r in range(12, 16): e(f'v_mov_b32 v{S[1][1]+r}, 0')
    e('s_waitcnt vmcnt(8)', 's_barrier', 'v_cmp_gt_u32 vcc, 32, v1')
    for q in range(2): e(f'v_cndmask_b32 v{Q[q]+4}, 0, v{Q[q]+4}, vcc')
    for x in rdK(0, 0) + rdK(1, 1) + rdV(0, 0): e(x)
    e('s_waitcnt lgkmcnt(0)')
    for q in range(2): e(qk(0, q, 0))
    for q in range(2): e(qk(0, q, 1))
    e('s_nop 15', 's_mov_b32 s41, 0')
    prof_mark(e, 0)
    lp = 'att_loop'; e.lab(lp)
    for gt in range(16):
        tl = gt & 3; sl = gt >> 2
        par = gt & 1; nx = par ^ 1
        X = []
        if tl == 2:
            e('s_waitcnt vmcnt(4) lgkmcnt(0)', 's_barrier')
            X = dma((sl+3) & 3)
        R = rdK(par, (gt+2) & 15) + rdV(nx, (gt+1) & 15)
        extra = {0: [R[0]], 1: [R[1], R[2]], 2: [R[3]]}
        for i, x in enumerate(X): extra.setdefault(2+i, []).append(x)
        mf = [pv(nx, 1, 0), pv(nx, 1, 1), qk(nx, 0, 0), qk(nx, 1, 0), pv(par, 0, 0), qk(nx, 0, 1), pv(par, 0, 1), qk(nx, 1, 1)]
        for b in range(8):
            q = b // 4; r0 = 4*(b % 4); sb = S[par][q]
            ex = [f'v_exp_f32 v{sb+r0+r}, v{sb+r0+r}' for r in range(4)]
            pm = perm(nx, 1, 12) if b == 0 else perm(par, (b-1)//4, 4*((b-1) % 4))
            e(ex[0], pm[0], ex[1], pm[1], ex[2])
            if b == 2: e('s_waitcnt lgkmcnt(3)')
            e(mf[b], ex[3])
            for x in extra.get(b, []): e(x)
    e('s_add_u32 s41, s41, 1', 's_cmp_lt_u32 s41, 4', f's_cbranch_scc1 {lp}')
    prof_mark(e, 1)
    e('s_nop 0', *perm(1, 1, 12))
    e('s_nop 1', pv(1, 1, 0), pv(1, 1, 1), 's_waitcnt vmcnt(0) lgkmcnt(0)', 's_nop 15', 's_nop 7')
    e('s_cmp_lg_u32 s44, 0', 's_cbranch_scc1 att_fin')
    if os.environ.get('NOEXP') or os.environ.get('NOCHK'): e('s_branch att_fin')
    e('s_mov_b64 s[46:47], 0')
    for q in range(2):
        l = O[q]+10
        e(f'v_cmp_nle_f32 vcc, 0x21800000, v{l}', 's_and_b32 vcc_hi, vcc_hi, 0', 's_or_b64 s[46:47], s[46:47], vcc')
        e(f'v_cmp_nge_f32 vcc, 0x5d800000, v{l}', 's_and_b32 vcc_hi, vcc_hi, 0', 's_or_b64 s[46:47], s[46:47], vcc')
        for r in range(10):
            e(f'v_cmp_class_f32 vcc, v{O[q]+r}, v{T}') if False else None
            e(f'v_and_b32 v{T}, 0x7f800000, v{O[q]+r}', f'v_cmp_eq_u32 vcc, 0x7f800000, v{T}')
            if r >= 8: e('s_and_b32 vcc_hi, vcc_hi, 0')
            e('s_or_b64 s[46:47], s[46:47], vcc')
    e('s_cmp_lg_u64 s[46:47], 0', 's_cselect_b32 s4, 1, 0', f'v_mov_b32 v{T}, s4', 's_lshl_b32 s5, s24, 2', f's_add_u32 s5, s5, {ST*NSL}', f'v_mov_b32 v{T+1}, s5')
    e(f'ds_write_b32 v{T+1}, v{T}', 's_waitcnt lgkmcnt(0)', 's_barrier', f'v_mov_b32 v{T+1}, {ST*NSL}', f'ds_read_b128 {vr(T+4,4)}, v{T+1}', 's_waitcnt lgkmcnt(0)')
    e(f'v_or_b32 v{T+4}, v{T+4}, v{T+5}', f'v_or_b32 v{T+6}, v{T+6}, v{T+7}', f'v_or_b32 v{T+4}, v{T+4}, v{T+6}', 's_nop 1', f'v_readfirstlane_b32 s4, v{T+4}', 's_cmp_eq_u32 s4, 0', 's_cbranch_scc1 att_fin')
    e('s_mov_b32 s44, 1')
    for q in range(2):
        for r in range(16): e(f'v_mov_b32 v{M[q]+r}, 0xff800000')
    e(f's_mul_i32 s33, s25, {KVH}', f's_add_u32 s33, s33, {KV}', 's_mov_b32 s41, 0')
    e.lab('att_mx')
    e(f'buffer_load_dwordx4 {vr(K[0],4)}, v3, s[16:19], s33 offen', f'buffer_load_dword v{K[0]+4}, v4, s[16:19], s33 offen offset:3072', 's_waitcnt vmcnt(0)')
    for q in range(2):
        e(f'v_mfma_f32_32x32x16_bf16 {vr(S[0][q],16)}, {vr(K[0],4)}, {vr(Q[q],4)}, 0', f'v_mfma_f32_32x32x16_bf16 {vr(S[0][q],16)}, {vr(K[0]+4,4)}, {vr(Q[q]+4,4)}, {vr(S[0][q],16)}')
    e('s_nop 15', 's_nop 7')
    for q in range(2):
        for r in range(16): e(f'v_max_f32 v{M[q]}, v{M[q]}, v{S[0][q]+r}')
    e(f's_add_u32 s33, s33, {TS}', 's_add_u32 s41, s41, 1', 's_cmp_lt_u32 s41, 64', 's_cbranch_scc1 att_mx')
    for q in range(2):
        e(f'v_mov_b32 v{T}, v{M[q]}', f'v_mov_b32 v{T+1}, v{M[q]}', 's_nop 1', f'v_permlane32_swap_b32 v{T}, v{T+1}', 's_nop 1', f'v_max_f32 v{T}, v{T}, v{T+1}', f'v_sub_f32 v{T}, 0, v{T}')
        for r in range(16): e(f'v_mov_b32 v{M[q]+r}, v{T}')
    e('s_barrier', 's_branch att_pass')
    e.lab('att_fin')
    for q in range(2):
        e(f'v_mov_b32 v{T}, v{O[q]+10}', f'v_mov_b32 v{T+1}, v{O[q]+10}', 's_nop 1', f'v_permlane32_swap_b32 v{T}, v{T+1}', 's_nop 1', f'v_rcp_f32 v{T}, v{T}', 's_nop 0')
        for r in range(10): e(f'v_mul_f32 v{O[q]+r}, v{T}, v{O[q]+r}')
        for x in range(5): e(f'v_cvt_pk_bf16_f32 v{T+4+x}, v{O[q]+2*x}, v{O[q]+2*x+1}')
        e('s_nop 1')
        for x in range(2): e(f'v_permlane32_swap_b32 v{T+4+x}, v{T+6+x}')
        e(f's_add_u32 s4, s27, {q}', f's_mul_i32 s4, s4, {36*1024}', f's_add_u32 s4, s4, {OF}', 's_lshl_b32 s5, s25, 10', 's_add_u32 s5, s5, s4', 's_nop 0')
        e(f'buffer_store_dwordx4 {vr(T+4,4)}, v3, s[16:19], s5 offen {os.environ.get("OST","sc0 sc1")}')
        e('s_lshr_b32 s5, s25, 3', 's_add_u32 s5, s5, 32', 's_lshl_b32 s5, s5, 10', 's_add_u32 s4, s4, s5', 's_bfe_u32 s5, s25, 0x10002', 's_lshl_b32 s5, s5, 9', 's_add_u32 s4, s4, s5',
          's_and_b32 s5, s25, 3', 's_lshl_b32 s5, s5, 2', 's_add_u32 s4, s4, s5')
        sk = e.u('lo')
        e(f'v_lshlrev_b32 v{T+2}, 4, v1', 's_mov_b32 exec_hi, 0', f'buffer_store_dword v{T+8}, v{T+2}, s[16:19], s4 offen', 's_mov_b32 exec_hi, -1', 's_nop 1')
    (e('s_cmp_ge_u32 s77, 8', 's_cselect_b32 s77, 999, s77') if PROF else None)
    prof_end(e, 's77', 2, 4) if PK == '2' else None
    tl_end(e, 1)
    e('s_endpgm')

def gemm2(e):
    SL = 20480; NSL = 3; RS = 384
    ACC = 128; X = 8; W = 24
    e(f's_sub_u32 s4, s2, {NATT}')
    e('s_and_b32 s5, s4, 7', 's_lshr_b32 s6, s4, 3', 's_and_b32 s7, s6, 1', 's_lshl_b32 s5, s5, 1', 's_add_u32 s25, s5, s7', 's_lshr_b32 s6, s6, 1')
    e('s_mul_i32 s7, s6, 43', 's_lshr_b32 s26, s7, 7', 's_mul_i32 s7, s26, 3', 's_sub_u32 s27, s6, s7')
    e('s_mul_i32 s28, s26, 29', 's_cmp_eq_u32 s26, 4', 's_cselect_b32 s29, 28, 29')
    srd(e, 12, 48, 4608*1152)
    e('s_lshl_b32 s4, s25, 2', 's_add_u32 s4, s4, s24', f's_mul_i32 s4, s4, {288*1024}', 's_lshl_b32 s5, s28, 11', 's_add_u32 s33, s4, s5', f's_add_u32 s33, s33, {HF}')
    e(f's_mul_i32 s34, s28, {32*1152}', 's_mul_i32 s4, s27, 384', 's_add_u32 s34, s34, s4')
    for i in range(3):
        e(f's_add_u32 s4, s24, {4*i}', 's_lshl_b32 s4, s4, 6', 'v_add_u32 v64, s4, v1', 's_mov_b32 s5, 2731', 'v_mul_lo_u32 v65, v64, s5', 'v_lshrrev_b32 v65, 16, v65')
        e('v_mul_u32_u24 v66, 24, v65', 'v_sub_u32 v66, v64, v66', 'v_lshlrev_b32 v67, 1, v65', 'v_and_b32 v67, 4, v67', 'v_xor_b32 v66, v66, v67', 'v_lshlrev_b32 v66, 4, v66')
        e(f'v_mul_u32_u24 v65, 1152, v65', f'v_add_u32 v{4+i}, v65, v66') if i < 2 else e('v_mul_u32_u24 v65, 1152, v65', 'v_add_u32 v48, v65, v66')
    VW = [4, 5, 48]
    e('s_lshl_b32 s35, s24, 11', 's_lshl_b32 s36, s24, 10', 's_add_u32 s36, s36, 8192', 's_mov_b32 s30, 0', 's_mov_b32 s38, 0')
    e('s_waitcnt lgkmcnt(0)'); fix_srd(e, 12)
    def dma():
        L = [['s_add_u32 m0, s30, s35', 's_nop 0', 'buffer_load_dwordx4 v3, s[16:19], s33 offen lds'], ['buffer_load_dwordx4 v3, s[16:19], s33 offen offset:1024 lds']]
        for i in range(3): L.append(['s_add_u32 m0, s30, s36' if i == 0 else 's_add_u32 m0, m0, 4096', 's_nop 0', f'buffer_load_dwordx4 v{VW[i]}, s[12:15], s34 offen lds'])
        L[-1] += ['s_add_u32 s33, s33, 2048', f's_add_u32 s34, s34, {32*1152}', 's_add_u32 s38, s38, 1', 's_cmp_ge_u32 s38, s29', 's_cselect_b32 s33, 0x40000000, s33', 's_cselect_b32 s34, 0x40000000, s34',
                  f's_add_u32 s30, s30, {SL}', f's_cmp_eq_u32 s30, {SL*NSL}', 's_cselect_b32 s30, 0, s30']
        return L
    for st in range(2):
        for d in dma(): em(e, d)
    e('s_and_b32 s39, s24, 1', 's_lshr_b32 s41, s24, 1')
    e('v_and_b32 v64, 15, v1', 'v_lshrrev_b32 v65, 5, v1', 'v_lshrrev_b32 v66, 2, v64', 'v_lshl_add_u32 v66, v65, 3, v66')
    e('v_bfe_u32 v67, v1, 4, 1', 'v_lshlrev_b32 v67, 5, v67', 'v_and_b32 v68, 3, v64', 'v_lshl_add_u32 v67, v68, 3, v67')
    e(f'v_mul_u32_u24 v66, {RS}, v66', 'v_add_u32 v66, v66, v67', 'v_bfe_u32 v67, v1, 3, 1', 'v_xor_b32 v67, s39, v67', 'v_lshl_add_u32 v66, v67, 6, v66', 'v_add_u32 v50, 8192, v66')
    e('s_lshl_b32 s4, s41, 12', 'v_add_u32 v51, s4, v3')
    for r in range(96): e(f'v_mov_b32 v{ACC+r}, 0')
    e('s_mov_b32 s40, 0', 's_mov_b32 s42, 0')
    prof_mark(e, 0)
    lp = 'g2_loop'; e.lab(lp)
    e('s_waitcnt vmcnt(5)', 's_barrier', 'v_add_u32 v52, s40, v50', 'v_add_u32 v53, s40, v51')
    R = []
    for s in range(2):
        for m in range(2): R.append(f'ds_read_b128 {vr(X+8*s+4*m,4)}, v53 offset:{2048*m+1024*s}')
        for t in range(3):
            for kk in range(2): R.append(f'ds_read_b64_tr_b16 {vr(W+12*s+4*t+2*kk,2)}, v52 offset:{(16*s+4*kk)*RS+128*t}')
    D = dma()
    for x in R[:8]: e(x)
    for d in D[:2]: em(e, d)
    for x in R[8:]: e(x)
    e('s_waitcnt lgkmcnt(8)')
    D = D[2:]
    for s in range(2):
        if s == 1: e('s_waitcnt lgkmcnt(0)')
        for t in range(3):
            for m in range(2):
                e(f'v_mfma_f32_32x32x16_bf16 {vr(ACC+16*(2*t+m),16)}, {vr(W+12*s+4*t,4)}, {vr(X+8*s+4*m,4)}, {vr(ACC+16*(2*t+m),16)}')
            if D: em(e, D.pop(0))
    e(f's_add_u32 s40, s40, {SL}', f's_cmp_eq_u32 s40, {SL*NSL}', 's_cselect_b32 s40, 0, s40', 's_add_u32 s42, s42, 1', 's_cmp_lt_u32 s42, s29', f's_cbranch_scc1 {lp}')
    prof_mark(e, 1)
    e('s_waitcnt vmcnt(0)', 's_nop 15', 's_nop 7')
    for t in range(3):
        for m in range(2):
            A = ACC+16*(2*t+m); P = 64+8*((2*t+m) % 4)
            for x in range(8): e(f'v_cvt_pk_bf16_f32 v{P+x}, v{A+2*x}, v{A+2*x+1}')
            e('s_lshl_b32 s4, s26, 6', 's_lshl_b32 s5, s25, 2', 's_add_u32 s4, s4, s5', 's_lshl_b32 s5, s41, 1', 's_add_u32 s4, s4, s5', f's_add_u32 s4, s4, {m}', 's_mul_i32 s4, s4, 18')
            e('s_mul_i32 s5, s27, 6', 's_add_u32 s4, s4, s5', 's_add_u32 s4, s4, s39', f's_add_u32 s4, s4, {2*t}', 's_lshl_b32 s4, s4, 11', f's_add_u32 s4, s4, {PART}')
            e(f'buffer_store_dwordx4 {vr(P,4)}, v3, s[16:19], s4 offen {os.environ.get("PST","sc0 sc1")}', f'buffer_store_dwordx4 {vr(P+4,4)}, v3, s[16:19], s4 offen offset:1024 {os.environ.get("PST","sc0 sc1")}', 's_nop 1')
    if PROF: e('s_sub_u32 s77, s77, 24', 's_cmp_lt_u32 s77, 8', 's_cselect_b32 s77, 999, s77')
    prof_end(e, 's77', 2, 4) if PK == '2' else None
    tl_end(e, 1)
    e('s_endpgm')

def prep(e):
    e(f's_sub_u32 s4, s2, {NATT+NG2}', 's_lshl_b32 s4, s4, 2', 's_add_u32 s27, s4, s24')
    srd(e, 12, 16, 576*1152)
    e('v_and_b32 v64, 31, v1', 'v_lshlrev_b32 v64, 1, v64', 'v_lshrrev_b32 v65, 5, v1')
    e('s_cmp_ge_u32 s27, 32', f's_cselect_b32 s5, {72*1152}, {8*1152}', 'v_mul_lo_u32 v66, s5, v65', 'v_add_u32 v66, v66, v64')
    e(f's_mul_i32 s28, s27, {18*1152}', 's_sub_u32 s29, s27, 32', f's_mul_i32 s29, s29, {144*1152}', f's_add_u32 s29, s29, {16*1152}')
    for j in range(8):
        e(f's_add_u32 s4, s28, {j*1152}', f's_add_u32 s5, s29, {(18*(j>>1)+(j&1))*1152}', 's_cmp_ge_u32 s27, 32', f's_cselect_b32 s{48+j}, s5, s4')
    e('s_waitcnt lgkmcnt(0)'); fix_srd(e, 12)
    e('s_lshl_b32 s4, s27, 10', f's_add_u32 s4, s4, {WOF}')
    for bt in range(3):
        for i in range(6):
            for j in range(8): e(f'buffer_load_ushort v{120+8*i+j}, v66, s[12:15], s{48+j} offen offset:{64*(6*bt+i)}')
        e('s_waitcnt vmcnt(0)')
        for i in range(6):
            for x in range(4): e(f'v_lshl_or_b32 v{80+4*i+x}, v{121+8*i+2*x}, 16, v{120+8*i+2*x}')
        for i in range(6):
            e(f'buffer_store_dwordx4 {vr(80+4*i,4)}, v3, s[16:19], s4 offen', f's_add_u32 s4, s4, {36*1024}')
        e('s_nop 1')
    tl_end(e, 1)
    e('s_endpgm')

def k2(e):
    header(e, 'k2_kernel')
    e(f's_cmp_ge_u32 s2, {NATT+NG2+NPREP}', 's_cbranch_scc1 k2_end')
    e('v_lshrrev_b32 v2, 6, v0', 'v_and_b32 v1, 63, v0', 's_nop 0', 'v_readfirstlane_b32 s24, v2', 'v_lshlrev_b32 v3, 4, v1')
    prof_start(e); tl_start(e)
    if PROF: e('s_lshr_b32 s77, s2, 3', 's_and_b32 s76, s2, 7', 's_cmp_lg_u32 s76, 0', 's_cselect_b32 s77, 999, s77')
    srd(e, 16, 88, WSEND)
    e('s_waitcnt lgkmcnt(0)'); fix_srd(e, 16)
    e(f's_cmp_ge_u32 s2, {NATT+NG2}', 's_cbranch_scc1 k2_prep', f's_cmp_ge_u32 s2, {NATT}', 's_cbranch_scc1 k2_g2')
    if os.environ.get('NOATT'): e('s_endpgm')
    e(f's_setprio {os.environ.get("APRIO", "3")}')
    attn(e)
    e.lab('k2_g2')
    if os.environ.get('NOG2'): e('s_endpgm')
    gemm2(e)
    e.lab('k2_prep'); prep(e)
    e.lab('k2_end'); e('s_endpgm')
```

```python
from common import *
NW3 = 192
LAUNCH = f'; @launch kernel=k3_kernel grid=({NW3},1,1) block=(384,1,1) lds=147456'
NV = 256
def k3(e):
    header(e, 'k3_kernel')
    e(f's_cmp_ge_u32 s2, {NW3}', 's_cbranch_scc1 k3_end')
    e('s_and_b32 s4, s2, 7', 's_lshr_b32 s5, s2, 3', 's_and_b32 s6, s5, 3', 's_lshl_b32 s4, s4, 2', 's_add_u32 s25, s4, s6', 's_lshr_b32 s26, s5, 2')
    e('v_lshrrev_b32 v2, 6, v0', 'v_and_b32 v1, 63, v0', 's_nop 0', 'v_readfirstlane_b32 s24, v2', 'v_lshlrev_b32 v3, 4, v1')
    tl_start(e)
    srd(e, 16, 88, WSEND); srd(e, 8, 72, 2048*576*2); srd(e, 12, 56, 1152)
    e('s_waitcnt lgkmcnt(0)')
    for d in (8, 12, 16): fix_srd(e, d)
    e('s_mul_i32 s27, s24, 6144', f's_mul_i32 s28, s25, {2*36*1024}', 's_add_u32 s28, s28, s27', f's_add_u32 s28, s28, {OF}')
    e(f's_mul_i32 s29, s26, {3*36*1024}', 's_add_u32 s29, s29, s27', f's_add_u32 s29, s29, {WOF}')
    e(f's_add_u32 s30, s28, {36*1024}', f's_add_u32 s31, s29, {36*1024}', f's_add_u32 s32, s29, {72*1024}')
    FR = 40; ACC = 160
    SB = (28, 30, 29, 31, 32)
    for i in range(6):
        if i == 4:
            for sb in SB: e(f's_add_u32 s{sb}, s{sb}, 4096')
        for q, sb in enumerate(SB):
            e(f'buffer_load_dwordx4 {vr(FR+20*i+4*q,4)}, v3, s[16:19], s{sb} offen offset:{1024*(i%4)}')
    e('s_cmp_ge_u32 s24, 3', 's_cselect_b32 s33, 1, 0', 's_mul_i32 s34, s33, 3', 's_sub_u32 s34, s24, s34', 's_lshl_b32 s35, s25, 1', 's_add_u32 s35, s35, s33', 's_mul_i32 s36, s26, 3', 's_add_u32 s36, s36, s34')
    for r in range(96): e(f'v_mov_b32 v{ACC+r}, 0')
    e('s_mul_i32 s37, s35, 18', 's_add_u32 s37, s37, s36', 's_lshl_b32 s37, s37, 11', f's_add_u32 s37, s37, {PART}')
    e('v_and_b32 v4, 31, v1', 'v_lshlrev_b32 v4, 2, v4', 's_lshl_b32 s38, s35, 7', f's_add_u32 s38, s38, {GT}')
    e('v_lshrrev_b32 v5, 5, v1', 'v_lshlrev_b32 v5, 3, v5', 's_lshl_b32 s39, s36, 6')
    def mm(i):
        F = FR+20*i
        for m in range(2):
            for n in range(3):
                A = ACC+16*(3*m+n)
                e(f'v_mfma_f32_32x32x16_bf16 {vr(A,16)}, {vr(F+8+4*n,4)}, {vr(F+4*m,4)}, {vr(A,16)}')
    for i in range(3):
        e(f's_waitcnt vmcnt({5*(5-i)})'); mm(i)
    e('s_nop 7')
    for sp in range(NSPLIT):
        e(f'buffer_load_dwordx4 {vr(40+8*sp,4)}, v3, s[16:19], s37 offen', f'buffer_load_dwordx4 {vr(44+8*sp,4)}, v3, s[16:19], s37 offen offset:1024')
        if sp < NSPLIT-1: e(f's_add_u32 s37, s37, {64*18*2048}')
    for g in range(4): e(f'buffer_load_dwordx2 v[{80+2*g}:{81+2*g}], v5, s[12:15], s39 offen offset:{16*g}')
    e('buffer_load_dword v6, v4, s[16:19], s38 offen')
    for i in range(3, 6):
        e(f's_waitcnt vmcnt({5*(5-i)+15})'); mm(i)
    e('s_nop 15', 's_nop 7')
    e(f's_mul_i32 s40, s24, 4096', 'v_add_u32 v7, s40, v3')
    for t in range(6):
        if t == 2 or t == 4: e(f'v_add_u32 v7, {2*24576}, v7')
        for g in range(4): e(f'ds_write_b128 v7, {vr(ACC+16*t+4*g,4)} offset:{24576*(t%2)+1024*g}')
    e('s_waitcnt lgkmcnt(0)', 's_barrier')
    e('s_mul_i32 s40, s24, 24576', 'v_add_u32 v7, s40, v3')
    for w in range(6):
        for g in range(4): e(f'ds_read_b128 {vr(160+16*w+4*g,4)}, v7 offset:{4096*w+1024*g}')
    e('s_waitcnt vmcnt(0)')
    R = 100
    for half in range(2):
        for x in range(4):
            i = 8*half+2*x
            g, j = i//4, i % 4
            e(f'v_lshlrev_b32 v{R+i}, 16, v{80+2*g+j//2}', f'v_and_b32 v{R+i+1}, 0xffff0000, v{80+2*g+j//2}')
            for sp in range(NSPLIT):
                r = 40+8*sp+4*half+x
                e(f'v_lshlrev_b32 v8, 16, v{r}', f'v_and_b32 v9, 0xffff0000, v{r}', f'v_add_f32 v{R+i}, v{R+i}, v8', f'v_add_f32 v{R+i+1}, v{R+i+1}, v9')
    e('v_sub_f32 v10, 1.0, v6', 's_waitcnt lgkmcnt(0)')
    for i in range(16):
        for w in range(1, 6): e(f'v_add_f32 v{160+i}, v{160+i}, v{160+16*w+i}')
        e(f'v_mul_f32 v{R+i}, v10, v{R+i}', f'v_fma_f32 v{160+i}, v6, v{160+i}, v{R+i}')
    pack_swap(e, 160, 120)
    e('v_and_b32 v4, 31, v1', 'v_mul_u32_u24 v4, 1152, v4', 'v_lshrrev_b32 v5, 5, v1', 'v_lshl_add_u32 v4, v5, 4, v4')
    e(f's_mul_i32 s38, s35, {32*1152}', 's_lshl_b32 s39, s36, 6', 's_add_u32 s38, s38, s39')
    e('buffer_store_dwordx4 v[120:123], v4, s[8:11], s38 offen', 'buffer_store_dwordx4 v[124:127], v4, s[8:11], s38 offen offset:32')
    tl_end(e, 2)
    e.lab('k3_end'); e('s_endpgm')
```

```python
NSPLIT = 5
HF = 0
QF = HF + 64*288*1024
Q2 = QF + 32*64*1024
KVT = 3328
KVH = 64*KVT
KV = Q2 + 32*2048*4
GT = KV + 32*KVH + 65536
OF = GT + 8192
WOF = OF + 64*36*1024
PART = WOF + 18*36*1024
WSEND = PART + NSPLIT*64*18*2048
```

```python
import sys, importlib
from common import *
import k1
NAME='gated_mix__softmax_full_mha__dense_activation_squared_relu__prompt'
parts = sys.argv[1].split(',') if len(sys.argv) > 1 else ['k1', 'k2', 'k3']
ref = open(f'cdna_kernels/{NAME}.s.ref').read().split('\n')
hdr = [l for l in ref if l.startswith('; ') and 'offset' in l[:12] or l.startswith('; Kernarg')]
e = E()
launch = {'k1': '; @launch kernel=k1_kernel grid=(256,1,1) block=(512,1,1) lds=155648'}
desc = ''
k1.k1(e); desc += descr('k1_kernel', 240)
if 'k2' in parts:
    import k2
    launch['k2'] = k2.LAUNCH; k2.k2(e); desc += descr('k2_kernel', k2.NV)
if 'k3' in parts:
    import k3
    launch['k3'] = k3.LAUNCH; k3.k3(e); desc += descr('k3_kernel', k3.NV)
out = '\n'.join(hdr) + '\n' + '\n'.join(launch[k] for k in ('k1', 'k2', 'k3') if k in launch) + '\n.amdgcn_target "amdgcn-amd-amdhsa--gfx950"\n' + e.txt() + desc
import os, re
ST = os.environ.get('ST', ''); ST3 = os.environ.get('ST3', 'nt')
L = out.split('\n'); in3 = False
for i, l in enumerate(L):
    if l.startswith('k3_kernel:'): in3 = True
    if l.strip().startswith('buffer_store') and 'sc0' not in l:
        L[i] = l.rstrip() + ' ' + (ST3 if in3 else ST)
out = '\n'.join(L)
open(sys.argv[2] if len(sys.argv) > 2 else f'cdna_kernels/{NAME}.s', 'w').write(out)
```

```python
from common import *
NW3 = 192
LAUNCH = f'; @launch kernel=k3_kernel grid=({NW3},1,1) block=(384,1,1) lds=147456'
NV = 256
def k3(e):
    header(e, 'k3_kernel')
    e(f's_cmp_ge_u32 s2, {NW3}', 's_cbranch_scc1 k3_end')
    e('s_and_b32 s4, s2, 7', 's_lshr_b32 s5, s2, 3', 's_and_b32 s6, s5, 3', 's_lshl_b32 s4, s4, 2', 's_add_u32 s25, s4, s6', 's_lshr_b32 s26, s5, 2')
    e('v_lshrrev_b32 v2, 6, v0', 'v_and_b32 v1, 63, v0', 's_nop 0', 'v_readfirstlane_b32 s24, v2', 'v_lshlrev_b32 v3, 4, v1')
    tl_start(e)
    srd(e, 16, 88, WSEND); srd(e, 8, 72, 2048*576*2); srd(e, 12, 56, 1152)
    e('s_waitcnt lgkmcnt(0)')
    for d in (8, 12, 16): fix_srd(e, d)
    e('s_mul_i32 s27, s24, 6144', f's_mul_i32 s28, s25, {2*36*1024}', 's_add_u32 s28, s28, s27', f's_add_u32 s28, s28, {OF}')
    e(f's_mul_i32 s29, s26, {3*36*1024}', 's_add_u32 s29, s29, s27', f's_add_u32 s29, s29, {WOF}')
    e(f's_add_u32 s30, s28, {36*1024}', f's_add_u32 s31, s29, {36*1024}', f's_add_u32 s32, s29, {72*1024}')
    FR = 40; ACC = 160
    SB = (28, 30, 29, 31, 32)
    for i in range(6):
        if i == 4:
            for sb in SB: e(f's_add_u32 s{sb}, s{sb}, 4096')
        for q, sb in enumerate(SB):
            e(f'buffer_load_dwordx4 {vr(FR+20*i+4*q,4)}, v3, s[16:19], s{sb} offen offset:{1024*(i%4)}')
    e('s_cmp_ge_u32 s24, 3', 's_cselect_b32 s33, 1, 0', 's_mul_i32 s34, s33, 3', 's_sub_u32 s34, s24, s34', 's_lshl_b32 s35, s25, 1', 's_add_u32 s35, s35, s33', 's_mul_i32 s36, s26, 3', 's_add_u32 s36, s36, s34')
    e('s_mul_i32 s37, s35, 18', 's_add_u32 s37, s37, s36', 's_lshl_b32 s37, s37, 11', f's_add_u32 s37, s37, {PART}')
    e('v_and_b32 v4, 31, v1', 'v_lshlrev_b32 v4, 2, v4', 's_lshl_b32 s38, s35, 7', f's_add_u32 s38, s38, {GT}')
    e('v_lshrrev_b32 v5, 5, v1', 'v_lshlrev_b32 v5, 3, v5', 's_lshl_b32 s39, s36, 6')
    def mm(i):
        F = FR+20*i
        for m in range(2):
            for n in range(3):
                A = ACC+16*(3*m+n)
                e(f'v_mfma_f32_32x32x16_bf16 {vr(A,16)}, {vr(F+8+4*n,4)}, {vr(F+4*m,4)}, {vr(A,16)}')
    e('s_mul_i32 s41, s24, 24576')
    for sp in range(NSPLIT):
        e(f's_add_u32 m0, s41, {2048*sp}', 's_nop 0', f'buffer_load_dwordx4 v3, s[16:19], s37 offen lds', f'buffer_load_dwordx4 v3, s[16:19], s37 offen offset:1024 lds')
        if sp < NSPLIT-1: e(f's_add_u32 s37, s37, {64*18*2048}')
    for g in range(4): e(f'buffer_load_dwordx2 v[{16+2*g}:{17+2*g}], v5, s[12:15], s39 offen offset:{16*g}')
    e('buffer_load_dword v6, v4, s[16:19], s38 offen')
    for r in range(96): e(f'v_mov_b32 v{ACC+r}, 0')
    e('s_nop 1')
    for i in range(6):
        e(f's_waitcnt vmcnt({5*(5-i)+15})'); mm(i)
    e('v_add_u32 v7, s41, v3', 's_waitcnt vmcnt(0)')
    for sp in range(NSPLIT):
        for h in range(2): e(f'ds_read_b128 {vr(40+8*sp+4*h,4)}, v7 offset:{2048*sp+1024*h}')
    e('s_waitcnt lgkmcnt(0)', 's_barrier')
    e('s_nop 15', 's_nop 7')
    e(f's_mul_i32 s40, s24, 4096', 'v_add_u32 v7, s40, v3')
    for t in range(6):
        if t == 2 or t == 4: e(f'v_add_u32 v7, {2*24576}, v7')
        for g in range(4): e(f'ds_write_b128 v7, {vr(ACC+16*t+4*g,4)} offset:{24576*(t%2)+1024*g}')
    e('s_waitcnt lgkmcnt(0)', 's_barrier')
    e('s_mul_i32 s40, s24, 24576', 'v_add_u32 v7, s40, v3')
    for w in range(6):
        for g in range(4): e(f'ds_read_b128 {vr(160+16*w+4*g,4)}, v7 offset:{4096*w+1024*g}')
    R = 100
    for half in range(2):
        for x in range(4):
            i = 8*half+2*x
            g, j = i//4, i % 4
            e(f'v_lshlrev_b32 v{R+i}, 16, v{16+2*g+j//2}', f'v_and_b32 v{R+i+1}, 0xffff0000, v{16+2*g+j//2}')
            for sp in range(NSPLIT):
                r = 40+8*sp+4*half+x
                e(f'v_lshlrev_b32 v8, 16, v{r}', f'v_and_b32 v9, 0xffff0000, v{r}', f'v_add_f32 v{R+i}, v{R+i}, v8', f'v_add_f32 v{R+i+1}, v{R+i+1}, v9')
    e('v_sub_f32 v10, 1.0, v6', 's_waitcnt lgkmcnt(0)')
    for i in range(16):
        for w in range(1, 6): e(f'v_add_f32 v{160+i}, v{160+i}, v{160+16*w+i}')
        e(f'v_mul_f32 v{R+i}, v10, v{R+i}', f'v_fma_f32 v{160+i}, v6, v{160+i}, v{R+i}')
    pack_swap(e, 160, 120)
    e('v_and_b32 v4, 31, v1', 'v_mul_u32_u24 v4, 1152, v4', 'v_lshrrev_b32 v5, 5, v1', 'v_lshl_add_u32 v4, v5, 4, v4')
    e(f's_mul_i32 s38, s35, {32*1152}', 's_lshl_b32 s39, s36, 6', 's_add_u32 s38, s38, s39')
    e('buffer_store_dwordx4 v[120:123], v4, s[8:11], s38 offen', 'buffer_store_dwordx4 v[124:127], v4, s[8:11], s38 offen offset:32')
    tl_end(e, 2)
    e.lab('k3_end'); e('s_endpgm')
```

```python
from common import *
QSC = '0x3eae1b5d'
import struct
def fbits(x): return '0x%08x' % struct.unpack('<I', struct.pack('<f', x))[0]
QSC = fbits(18**-0.5 * 1.4426950408889634)
ACC = 128
SLOT = 30720; NS = 5; GOFF = SLOT*NS
VXO, VWO, VSO, VXR, VWR, VSP, VG, VL16 = 4, 6, 8, 10, 12, 13, 14, 15
LP = 16
SETA, SETB = 24, 48
def k1_role(e, role):
    tiles = {'ffn': ['ffn']*3, 'qkl': ['qk']*3, 'qkg': ['qk']*3, 'mix': ['qk', 'v', 'v'], 'vl': ['v']*3}[role]
    sp = {'qkl': 'qkl', 'qkg': 'gate', 'vl': 'vl'}.get(role)
    RS = 384; wstride = 9216 if role == 'ffn' else 3456
    spd = sp in ('qkl', 'vl')
    for i in range(2):
        e(f's_add_u32 s4, s24, {8*i}', 's_lshl_b32 s4, s4, 6', 'v_add_u32 v64, s4, v1')
        e('s_mov_b32 s5, 2731', 'v_mul_lo_u32 v65, v64, s5', 'v_lshrrev_b32 v65, 16, v65')
        e('v_mul_u32_u24 v66, 24, v65', 'v_sub_u32 v66, v64, v66')
        e('v_lshlrev_b32 v67, 1, v65', 'v_and_b32 v67, 4, v67', 'v_xor_b32 v66, v66, v67')
        if role == 'ffn':
            e('v_lshlrev_b32 v66, 4, v66', 'v_mul_u32_u24 v65, 9216, v65', 's_mul_i32 s4, s26, 384', f'v_add3_u32 v{VWO+i}, v65, v66, s4')
        else:
            e('v_lshrrev_b32 v67, 1, v66', 'v_mul_u32_u24 v67, 36, v67', 'v_and_b32 v66, 1, v66', 'v_lshl_add_u32 v66, v66, 4, v67')
            e('v_mul_u32_u24 v65, 3456, v65', 's_mul_i32 s4, s31, 72', f'v_add3_u32 v{VWO+i}, v65, v66, s4')
    if spd:
        e('s_lshl_b32 s4, s24, 2', 'v_lshrrev_b32 v64, 4, v1', 'v_add_u32 v64, s4, v64', 'v_mul_u32_u24 v64, 3456, v64')
        e('v_and_b32 v65, 15, v1', 'v_mul_u32_u24 v65, 36, v65', 's_mul_i32 s4, s36, 576', 's_add_u32 s4, s4, 32', f'v_add3_u32 v{VSO}, v64, v65, s4')
    def dma_list():
        L = []
        for i in range(2): L.append([f's_add_u32 m0, s30, s33' if i == 0 else f's_add_u32 m0, m0, 1024', 's_nop 0', f'buffer_load_dwordx4 v{VXO+i}, s[8:11], s28 offen lds'])
        L.append(['s_add_u32 m0, s30, s34', 's_nop 0', f'buffer_load_dwordx4 v{VWO}, s[12:15], s29 offen lds'])
        sk = e.u('w2')
        L.append(['s_cmp_ge_u32 s24, 4', f's_cbranch_scc1 {sk}', 's_add_u32 m0, m0, 8192', 's_nop 0', f'buffer_load_dwordx4 v{VWO+1}, s[12:15], s29 offen lds', ('lab', sk)])
        if spd: L.append(['s_add_u32 m0, s30, s37', 's_nop 0', f'buffer_load_dword v{VSO}, s[12:15], s29 offen lds'])
        L[-1] = L[-1] + ['s_add_u32 s28, s28, 64', f's_add_u32 s29, s29, {32*wstride}', 's_add_u32 s38, s38, 1', 's_cmp_ge_u32 s38, 18', 's_cselect_b32 s28, 0x40000000, s28', 's_cselect_b32 s29, 0x40000000, s29',
                         f's_add_u32 s30, s30, {SLOT}', f's_cmp_eq_u32 s30, {SLOT*NS}', 's_cselect_b32 s30, 0, s30']
        return L
    def em(d):
        for x in d:
            if isinstance(x, tuple): e.lab(x[1])
            else: e(x)
    PER = 4 if spd else 3
    e('s_lshl_b32 s33, s24, 11', 's_lshl_b32 s34, s24, 10', 's_add_u32 s34, s34, 16384', 's_lshl_b32 s37, s24, 8', f's_add_u32 s37, s37, {16384+12288}', 's_mov_b32 s28, 0', 's_mov_b32 s29, 0', 's_mov_b32 s30, 0', 's_mov_b32 s38, 0')
    if role == 'ffn':
        e('v_lshrrev_b32 v64, 5, v1', 'v_lshlrev_b32 v64, 3, v64', 's_mul_i32 s4, s26, 384', 's_lshl_b32 s5, s39, 6', 's_add_u32 s4, s4, s5', 'v_add_u32 v64, s4, v64')
        for t in range(3):
            for g in range(4): e(f'buffer_load_dwordx2 v[{72+8*t+2*g}:{73+8*t+2*g}], v64, s[20:23], 0 offen offset:{128*t+16*g}')
    if sp == 'gate':
        e('s_cmp_lg_u32 s24, 0', 's_cbranch_scc1 k1_nog', f's_mov_b32 m0, {GOFF}', 'v_lshlrev_b32 v64, 4, v1', 'buffer_load_dwordx4 v64, s[20:23], 0 offen lds',
          f's_mov_b32 m0, {GOFF+1024}', 'v_add_u32 v64, 1024, v64', 'buffer_load_dwordx4 v64, s[20:23], 0 offen lds')
        e.lab('k1_nog')
        e('v_lshrrev_b32 v64, 5, v1', 'v_lshlrev_b32 v64, 4, v64', f'v_add_u32 v{VG}, {GOFF}, v64')
    for st in range(NS-1):
        for d in dma_list(): em(d)
    NPF = 0
    if role != 'ffn' and not os.environ.get('NOPF'):
        NPF = 1
        e('s_lshr_b32 s4, s2, 3', 's_mul_i32 s4, s4, 486', 'v_add_u32 v64, s4, v0', 'v_lshlrev_b32 v64, 7, v64', 'v_mov_b32 v65, 0x7f000000', 'v_cmp_gt_u32 vcc, 486, v0')
        e('v_cndmask_b32 v64, v65, v64, vcc', 'buffer_load_dword v97, v64, s[12:15], 0 offen')
    e('v_and_b32 v64, 15, v1', 'v_lshrrev_b32 v65, 5, v1', 'v_lshrrev_b32 v66, 2, v64', 'v_lshl_add_u32 v66, v65, 3, v66')
    e('v_bfe_u32 v67, v1, 4, 1', 'v_lshlrev_b32 v67, 5, v67', 'v_and_b32 v68, 3, v64', 'v_lshl_add_u32 v67, v68, 3, v67')
    e('v_mul_u32_u24 v68, 64, v66', f'v_add_u32 v{LP+3}, v68, v67', f'v_add_u32 v{LP+3}, {16384+12288}, v{LP+3}')
    e(f'v_mul_u32_u24 v66, {RS}, v66', 'v_add_u32 v66, v66, v67', 'v_bfe_u32 v67, v1, 3, 1', 'v_xor_b32 v67, s39, v67', 'v_lshl_add_u32 v66, v67, 6, v66', f'v_add_u32 v{LP+2}, 16384, v66')
    for s in range(2):
        e('v_and_b32 v64, 31, v1', 'v_bfe_u32 v65, v1, 2, 2', 'v_lshrrev_b32 v66, 5, v1', f'v_add_u32 v66, {2*s}, v66', 'v_xor_b32 v65, v65, v66')
        e('v_lshlrev_b32 v64, 6, v64', 'v_lshl_add_u32 v64, v65, 4, v64', 's_lshr_b32 s4, s24, 1', 's_lshl_b32 s4, s4, 12', f'v_add_u32 v{LP+s}, s4, v64')
    nacc = 6 + (1 if sp else 0)
    if role != 'ffn':
        for r in range(16*nacc): e(f'v_mov_b32 v{ACC+r}, 0')
    e(f's_waitcnt vmcnt({PER*(NS-2)+NPF})')
    if role == 'ffn':
        for t in range(3):
            for g in range(4):
                for x in range(2):
                    r = 72+8*t+2*g+x
                    for m in range(2): e(f'v_lshlrev_b32 v{ACC+16*(2*t+m)+4*g+2*x}, 16, v{r}', f'v_and_b32 v{ACC+16*(2*t+m)+4*g+2*x+1}, 0xffff0000, v{r}')
    def addr():
        e(f'v_add_u32 v{VXR}, s40, v{LP}', f'v_add_u32 v{VXR+1}, s40, v{LP+1}', f'v_add_u32 v{VWR}, s40, v{LP+2}')
        if spd: e(f'v_add_u32 v{VSP}, s40, v{LP+3}')
    def reads(S, s):
        L = []
        for m in range(2): L.append(f'ds_read_b128 {vr(S+4*m,4)}, v{VXR+s} offset:{2048*m}')
        if not os.environ.get('NORD'):
            for t in range(3):
                for kk in range(2): L.append(f'ds_read_b64_tr_b16 {vr(S+8+4*t+2*kk,2)}, v{VWR} offset:{(16*s+4*kk)*RS+128*t}')
            if spd:
                for kk in range(2): L.append(f'ds_read_b64_tr_b16 {vr(S+20+2*kk,2)}, v{VSP} offset:{(16*s+4*kk)*64}')
            if sp == 'gate': L.append(f'ds_read_b128 {vr(S+20,4)}, v{VG} offset:{32*s}')
        return L
    def mfmas(S):
        L = []
        for t in range(3):
            for m in range(2):
                a, b = (S+4*m, S+8+4*t) if tiles[t] == 'v' else (S+8+4*t, S+4*m)
                L.append(f'v_mfma_f32_32x32x16_bf16 {vr(ACC+16*(2*t+m),16)}, {vr(a,4)}, {vr(b,4)}, {vr(ACC+16*(2*t+m),16)}')
        if sp:
            for wn in range(2):
                pass
        return L
    def special(S):
        if not sp: return
        l0, l1 = e.u('sp0'), e.u('sp1')
        e('s_cmp_eq_u32 s39, 0', f's_cbranch_scc1 {l0}')
        for wn in (1, 0):
            if wn == 0: e.lab(l0)
            a, b = (S+4*wn, S+20) if sp == 'vl' else (S+20, S+4*wn)
            e(f'v_mfma_f32_32x32x16_bf16 {vr(ACC+96,16)}, {vr(a,4)}, {vr(b,4)}, {vr(ACC+96,16)}')
            if wn == 1: e(f's_branch {l1}')
        e.lab(l1)
    def spm(S, wn):
        a, b = (S+4*wn, S+20) if sp == 'vl' else (S+20, S+4*wn)
        return f'v_mfma_f32_32x32x16_bf16 {vr(ACC+96,16)}, {vr(a,4)}, {vr(b,4)}, {vr(ACC+96,16)}'
    def half(S, R, D, wn=None):
        M = [] if os.environ.get('NOMFMA') else mfmas(S)
        if sp: M.insert(int(os.environ.get('SPOS', '6')), spm(S, wn))
        R = list(R); D = list(D)
        for x in R[:4]: e(x)
        R = R[4:]
        for i in range(7 if sp else 6):
            if M: e(M[i])
            for x in R[:2]: e(x)
            R = R[2:]
            if D: em(D.pop(0))
        for x in R: e(x)
        for d in D: em(d)
    e('s_barrier', 's_mov_b32 s40, 0')
    addr()
    for x in reads(SETA, 0): e(x)
    e('s_mov_b32 s27, 0')
    def loop(wn):
        lp = e.u('k1loop'); e.lab(lp)
        e('s_waitcnt lgkmcnt(0)')
        half(SETA, reads(SETB, 1), [] if os.environ.get('NODMA') else dma_list(), wn)
        e('s_waitcnt lgkmcnt(0)', f's_waitcnt vmcnt({PER*(NS-2)})', 's_barrier')
        e(f's_add_u32 s40, s40, {SLOT}', f's_cmp_eq_u32 s40, {SLOT*NS}', 's_cselect_b32 s40, 0, s40')
        addr()
        if sp == 'gate': e(f'v_add_u32 v{VG}, 64, v{VG}')
        half(SETB, reads(SETA, 0), [], wn)
        e('s_add_u32 s27, s27, 1', 's_cmp_lt_u32 s27, 18', f's_cbranch_scc1 {lp}')
    if sp:
        l0, l1 = e.u('lw0'), e.u('lw1')
        e('s_cmp_eq_u32 s39, 0', f's_cbranch_scc1 {l0}')
        loop(1); e(f's_branch {l1}'); e.lab(l0); loop(0); e.lab(l1)
    else: loop(None)
    e('s_waitcnt lgkmcnt(0)', 's_nop 15', 's_nop 7')
    prof_mark(e, 0)
    items = [(tiles[t], ACC+16*(2*t+m), t, m) for t in range(3) for m in range(2)]
    if sp: items.append((sp, ACC+96, 0, 0))
    for k, (ty, A, t, m) in enumerate(items):
        P = 64 + 8*(k % 4)
        if ty == 'ffn':
            for r in range(16): e(f'v_max_f32 v{96+r}, 0, v{A+r}')
            for r in range(16): e(f'v_mul_f32 v{A+r}, v{96+r}, v{96+r}')
            pack_swap(e, A, P)
            e(f's_add_u32 s4, s41, {m}', f's_mul_i32 s4, s4, {288*1024}', f's_mul_i32 s5, s26, {12*1024}', 's_add_u32 s4, s4, s5', 's_lshl_b32 s5, s39, 11', 's_add_u32 s4, s4, s5', f's_add_u32 s4, s4, {HF+4*t*1024}')
            e(f'buffer_store_dwordx4 {vr(P,4)}, v{VL16}, s[16:19], s4 offen {os.environ.get("HST","sc0 sc1")}', f'buffer_store_dwordx4 {vr(P+4,4)}, v{VL16}, s[16:19], s4 offen offset:1024 {os.environ.get("HST","sc0 sc1")}')
        elif ty == 'qk':
            e(f's_add_u32 s5, s31, {2*t}', 's_add_u32 s5, s5, s39', 's_cmp_lt_u32 s5, 16', f's_cselect_b32 s6, {QSC}, 1.0')
            for r in range(16): e(f'v_mul_f32 v{A+r}, s6, v{A+r}')
            pack_swap(e, A, P)
            e(f's_add_u32 s4, s41, {m}', f's_cselect_b32 s7, 0, 0', 's_cmp_lt_u32 s5, 16', f's_cselect_b32 s6, 1024, {KVT}', 's_mul_i32 s4, s4, s6', f's_cselect_b32 s6, 65536, {KVH}', f's_cselect_b32 s7, {QF}, {KV-32*KVH}',
              's_mul_i32 s5, s5, s6', 's_lshl_b32 s5, s5, 1', 's_add_u32 s4, s4, s5', 's_add_u32 s4, s4, s7', 's_add_u32 s5, s4, s6')
            e(f'buffer_store_dwordx4 {vr(P,4)}, v{VL16}, s[16:19], s4 offen {os.environ.get("QST","sc0 sc1")}', f'buffer_store_dwordx4 {vr(P+4,4)}, v{VL16}, s[16:19], s5 offen {os.environ.get("QST","sc0 sc1")}')
        elif ty in ('v', 'vl'):
            for g in range(4):
                for x in range(2): e(f'v_cvt_pk_bf16_f32 v{P+2*g+x}, v{A+4*g+2*x}, v{A+4*g+2*x+1}')
            if ty == 'v':
                e('v_bfe_u32 v100, v1, 4, 1', f'v_mul_u32_u24 v100, {KVH}, v100', 'v_and_b32 v101, 47, v1', 'v_lshl_add_u32 v100, v101, 4, v100')
                e(f's_add_u32 s5, s31, {2*t}', 's_add_u32 s5, s5, s39', 's_sub_u32 s5, s5, 32', f's_mul_i32 s5, s5, {2*KVH}', f's_add_u32 s4, s41, {m}', f's_mul_i32 s4, s4, {KVT}')
            else:
                e('v_bfe_u32 v100, v1, 1, 4', f'v_mul_u32_u24 v100, {KVH}, v100', 'v_and_b32 v101, 33, v1', 'v_add_u32 v101, 16, v101', 'v_lshl_add_u32 v100, v101, 4, v100')
                e('s_sub_u32 s5, s36, 4', f's_mul_i32 s5, s5, {16*KVH}', f's_mul_i32 s4, s32, {KVT}')
            e('s_add_u32 s4, s4, s5', f's_add_u32 s4, s4, {KV+1024}')
            e(f'buffer_store_dwordx4 {vr(P,4)}, v100, s[16:19], s4 offen {os.environ.get("QST","sc0 sc1")}', f'buffer_store_dwordx4 {vr(P+4,4)}, v100, s[16:19], s4 offen offset:1024 {os.environ.get("QST","sc0 sc1")}')
            if ty == 'vl':
                e('v_bfe_u32 v102, v1, 1, 4', f'v_mul_u32_u24 v102, {KVH}, v102', 'v_and_b32 v101, 32, v1', 'v_add_u32 v101, 18, v101', 'v_lshl_add_u32 v102, v101, 4, v102')
                for x in range(4): e(f'v_mov_b32 v{104+x}, 0x3f803f80')
                e('buffer_store_dwordx4 v[104:107], v102, s[16:19], s4 offen', 'buffer_store_dwordx4 v[104:107], v102, s[16:19], s4 offen offset:1024')
        elif ty == 'qkl':
            e('s_cmp_lt_u32 s36, 2', f's_cselect_b32 s6, {QSC}, 1.0')
            for r in range(16): e(f'v_mul_f32 v{A+r}, s6, v{A+r}')
            for g in range(4):
                for x in range(2): e(f'v_cvt_pk_bf16_f32 v{P+2*g+x}, v{A+4*g+2*x}, v{A+4*g+2*x+1}')
            e('s_cmp_lt_u32 s36, 2', f's_cselect_b32 s7, 8192, {KVH}', f's_cselect_b32 s5, 128, {KVT}', f's_cselect_b32 s6, {Q2}, {KV-32*KVH+3072}', 's_mul_i32 s4, s32, s5', 's_add_u32 s4, s4, s6', 's_mul_i32 s5, s36, s7', 's_lshl_b32 s5, s5, 4', 's_add_u32 s4, s4, s5')
            e('v_lshrrev_b32 v100, 5, v1', 's_lshl_b32 s5, s7, 1', 'v_mul_lo_u32 v100, v100, s5', 'v_and_b32 v101, 31, v1', 'v_lshl_add_u32 v100, v101, 2, v100')
            for g in range(4):
                for x in range(2):
                    e(f's_mul_i32 s5, s7, {4*g+x}', 's_add_u32 s5, s5, s4', f'buffer_store_dword v{P+2*g+x}, v100, s[16:19], s5 offen')
        elif ty == 'gate':
            e(f'v_mul_f32 v100, 0xbfb8aa3b, v{A}', 'v_exp_f32 v100, v100', 's_nop 0', 'v_add_f32 v100, 1.0, v100', 'v_rcp_f32 v100, v100')
            e('v_and_b32 v101, 31, v1', 'v_lshlrev_b32 v101, 2, v101', 's_lshl_b32 s4, s32, 7', f's_add_u32 s4, s4, {GT}', 's_nop 0', 'buffer_store_dword v100, v101, s[16:19], s4 offen')
        e('s_nop 1')
    e('s_waitcnt vmcnt(0)') if PROF else None
    if PROF: e('s_lshl_b32 s77, s25, 6', 's_add_u32 s77, s77, s26', 's_lshr_b32 s77, s77, 0')
    e('s_mov_b32 s77, s2') if PROF else None
    if PROF: e('s_waitcnt lgkmcnt(0)', 's_lshl_b32 s76, s76, 24', 's_add_u32 s80, s80, s76', 's_sub_u32 s80, s80, s76', 's_sub_u32 s80, s80, s76')
    prof_end(e, 's77', 1, 2) if os.environ.get('PK','1')=='1' else None
    tl_end(e, 0)
    e('s_endpgm')

def k1(e):
    header(e, 'k1_kernel')
    e('s_cmp_ge_u32 s2, 256', 's_cbranch_scc1 k1_end')
    e('s_and_b32 s4, s2, 7', 's_lshr_b32 s5, s2, 3')
    e('s_and_b32 s6, s4, 1', 's_lshl_b32 s6, s6, 2', 's_and_b32 s7, s5, 3', 's_add_u32 s25, s6, s7')
    e('s_lshr_b32 s6, s4, 1', 's_lshl_b32 s6, s6, 3', 's_lshr_b32 s7, s5, 2', 's_add_u32 s26, s6, s7')
    if os.environ.get('SAME'): e('s_mov_b32 s25, 0', 's_and_b32 s26, s26, 1')
    if PROF: e('s_getreg_b32 s76, hwreg(HW_REG_XCC_ID)', 's_and_b32 s76, s76, 15')
    e('v_lshrrev_b32 v2, 6, v0', 'v_and_b32 v1, 63, v0', 's_nop 0', 'v_readfirstlane_b32 s24, v2', f'v_lshlrev_b32 v{VL16}, 4, v1')
    prof_start(e); tl_start(e)
    srd(e, 16, 88, WSEND)
    e('s_lshl_b32 s32, s25, 3', 's_add_u32 s32, s32, s24')
    e('s_cmp_ge_u32 s26, 24', 's_cbranch_scc1 k1_qkv')
    srd(e, 8, 0, 2359296); srd(e, 12, 32, 5308416); srd(e, 20, 40, 9216)
    e('s_branch k1_go')
    e.lab('k1_qkv')
    srd(e, 8, 0, 2359296); srd(e, 12, 8, 1990656); srd(e, 20, 64, 1152)
    e.lab('k1_go')
    e('s_and_b32 s39, s24, 1', 's_lshr_b32 s41, s24, 1', 's_lshl_b32 s41, s41, 1', 's_lshl_b32 s4, s25, 3', 's_add_u32 s41, s41, s4')
    for i in range(2):
        e('v_lshrrev_b32 v64, 2, v1', f'v_add_u32 v64, {16*i}, v64', 'v_bfe_u32 v65, v64, 2, 2', 'v_and_b32 v66, 3, v1', 'v_xor_b32 v65, v65, v66')
        e('s_lshl_b32 s4, s32, 5', 'v_add_u32 v64, s4, v64', 'v_mul_u32_u24 v64, 1152, v64', f'v_lshl_add_u32 v{VXO+i}, v65, 4, v64')
    e('s_waitcnt lgkmcnt(0)')
    for d in (8, 12, 16, 20): fix_srd(e, d)
    e('s_sub_u32 s35, s26, 24', 's_mul_i32 s31, s35, 6')
    e('s_sub_u32 s4, s35, 2', 's_cmp_lt_u32 s35, 4', 's_cselect_b32 s36, s35, s4')
    e('s_cmp_lt_u32 s26, 24', 's_cbranch_scc1 k1_ffn', 's_cmp_lt_u32 s26, 28', 's_cbranch_scc1 k1_qkl', 's_cmp_eq_u32 s26, 28', 's_cbranch_scc1 k1_qkg', 's_cmp_eq_u32 s26, 29', 's_cbranch_scc1 k1_mix', 's_branch k1_vl')
    for r in ('ffn', 'qkl', 'qkg', 'mix', 'vl'):
        e.lab('k1_' + r); k1_role(e, r)
    e.lab('k1_end'); e('s_endpgm')
```

```python
from common import *
import os
NW3 = 192
LAUNCH = f'; @launch kernel=k3_kernel grid=({NW3},1,1) block=(384,1,1) lds=147456'
NV = 256
def k3(e):
    header(e, 'k3_kernel')
    e(f's_cmp_ge_u32 s2, {NW3}', 's_cbranch_scc1 k3_end')
    e('s_and_b32 s4, s2, 7', 's_lshr_b32 s5, s2, 3', 's_and_b32 s6, s5, 3', 's_lshl_b32 s4, s4, 2', 's_add_u32 s25, s4, s6', 's_lshr_b32 s26, s5, 2')
    e('v_lshrrev_b32 v2, 6, v0', 'v_and_b32 v1, 63, v0', 's_nop 0', 'v_readfirstlane_b32 s24, v2', 'v_lshlrev_b32 v3, 4, v1')
    tl_start(e)
    srd(e, 16, 88, WSEND); srd(e, 8, 72, 2048*576*2); srd(e, 12, 56, 1152)
    e('s_waitcnt lgkmcnt(0)')
    for d in (8, 12, 16): fix_srd(e, d)
    e('s_mul_i32 s27, s24, 6144', f's_mul_i32 s28, s25, {2*36*1024}', 's_add_u32 s28, s28, s27', f's_add_u32 s28, s28, {OF}')
    e(f's_mul_i32 s29, s26, {3*36*1024}', 's_add_u32 s29, s29, s27', f's_add_u32 s29, s29, {WOF}')
    e(f's_add_u32 s30, s28, {36*1024}', f's_add_u32 s31, s29, {36*1024}', f's_add_u32 s32, s29, {72*1024}')
    FR = 40; ACC = 160
    SB = (28, 30, 29, 31, 32)
    for i in range(6):
        if i == 4:
            for sb in SB: e(f's_add_u32 s{sb}, s{sb}, 4096')
        for q, sb in enumerate(SB):
            e(f'buffer_load_dwordx4 {vr(FR+20*i+4*q,4)}, v3, s[16:19], s{sb} offen offset:{1024*(i%4)}')
    e('s_cmp_ge_u32 s24, 3', 's_cselect_b32 s33, 1, 0', 's_mul_i32 s34, s33, 3', 's_sub_u32 s34, s24, s34', 's_lshl_b32 s35, s25, 1', 's_add_u32 s35, s35, s33', 's_mul_i32 s36, s26, 3', 's_add_u32 s36, s36, s34')
    e('s_mul_i32 s37, s35, 18', 's_add_u32 s37, s37, s36', 's_lshl_b32 s37, s37, 11', f's_add_u32 s37, s37, {PART}')
    e('v_and_b32 v4, 31, v1', 'v_lshlrev_b32 v4, 2, v4', 's_lshl_b32 s38, s35, 7', f's_add_u32 s38, s38, {GT}')
    e('v_lshrrev_b32 v5, 5, v1', 'v_lshlrev_b32 v5, 3, v5', 's_lshl_b32 s39, s36, 6')
    def mm(i):
        F = FR+20*i
        for m in range(2):
            for n in range(3):
                A = ACC+16*(3*m+n)
                e(f'v_mfma_f32_32x32x16_bf16 {vr(A,16)}, {vr(F+8+4*n,4)}, {vr(F+4*m,4)}, {vr(A,16)}')
    if not os.environ.get('K3NEW'):
        for r in range(96): e(f'v_mov_b32 v{ACC+r}, 0')
        e('s_nop 1')
        for i in range(3):
            e(f's_waitcnt vmcnt({5*(5-i)})'); mm(i)
        e('s_nop 7')
        for sp in range(NSPLIT):
            e(f'buffer_load_dwordx4 {vr(40+8*sp,4)}, v3, s[16:19], s37 offen', f'buffer_load_dwordx4 {vr(44+8*sp,4)}, v3, s[16:19], s37 offen offset:1024')
            if sp < NSPLIT-1: e(f's_add_u32 s37, s37, {64*18*2048}')
        for g in range(4): e(f'buffer_load_dwordx2 v[{16+2*g}:{17+2*g}], v5, s[12:15], s39 offen offset:{16*g}')
        e('buffer_load_dword v6, v4, s[16:19], s38 offen')
        for i in range(3, 6):
            e(f's_waitcnt vmcnt({5*(5-i)+15})'); mm(i)
    else:
        e('s_mul_i32 s41, s24, 24576')
        for sp in range(NSPLIT):
            e(f's_add_u32 m0, s41, {2048*sp}', 's_nop 0', f'buffer_load_dwordx4 v3, s[16:19], s37 offen lds', f'buffer_load_dwordx4 v3, s[16:19], s37 offen offset:1024 lds')
            if sp < NSPLIT-1: e(f's_add_u32 s37, s37, {64*18*2048}')
        for g in range(4): e(f'buffer_load_dwordx2 v[{16+2*g}:{17+2*g}], v5, s[12:15], s39 offen offset:{16*g}')
        e('buffer_load_dword v6, v4, s[16:19], s38 offen')
        for r in range(96): e(f'v_mov_b32 v{ACC+r}, 0')
        e('s_nop 1')
        for i in range(6):
            e(f's_waitcnt vmcnt({5*(5-i)+15})'); mm(i)
        e('v_add_u32 v7, s41, v3', 's_waitcnt vmcnt(0)')
        for sp in range(NSPLIT):
            for h in range(2): e(f'ds_read_b128 {vr(40+8*sp+4*h,4)}, v7 offset:{2048*sp+1024*h}')
        e('s_waitcnt lgkmcnt(0)', 's_barrier')
    e('s_nop 15', 's_nop 7')
    e(f's_mul_i32 s40, s24, 4096', 'v_add_u32 v7, s40, v3')
    for t in range(6):
        if t == 2 or t == 4: e(f'v_add_u32 v7, {2*24576}, v7')
        for g in range(4): e(f'ds_write_b128 v7, {vr(ACC+16*t+4*g,4)} offset:{24576*(t%2)+1024*g}')
    e('s_waitcnt lgkmcnt(0)', 's_barrier')
    e('s_mul_i32 s40, s24, 24576', 'v_add_u32 v7, s40, v3')
    for w in range(6):
        for g in range(4): e(f'ds_read_b128 {vr(160+16*w+4*g,4)}, v7 offset:{4096*w+1024*g}')
    e('s_waitcnt vmcnt(0)')
    R = 100
    for half in range(2):
        for x in range(4):
            i = 8*half+2*x
            g, j = i//4, i % 4
            e(f'v_lshlrev_b32 v{R+i}, 16, v{16+2*g+j//2}', f'v_and_b32 v{R+i+1}, 0xffff0000, v{16+2*g+j//2}')
            for sp in range(NSPLIT):
                r = 40+8*sp+4*half+x
                e(f'v_lshlrev_b32 v8, 16, v{r}', f'v_and_b32 v9, 0xffff0000, v{r}', f'v_add_f32 v{R+i}, v{R+i}, v8', f'v_add_f32 v{R+i+1}, v{R+i+1}, v9')
    e('v_sub_f32 v10, 1.0, v6', 's_waitcnt lgkmcnt(0)')
    for i in range(16):
        for w in range(1, 6): e(f'v_add_f32 v{160+i}, v{160+i}, v{160+16*w+i}')
        e(f'v_mul_f32 v{R+i}, v10, v{R+i}', f'v_fma_f32 v{160+i}, v6, v{160+i}, v{R+i}')
    pack_swap(e, 160, 120)
    e('v_and_b32 v4, 31, v1', 'v_mul_u32_u24 v4, 1152, v4', 'v_lshrrev_b32 v5, 5, v1', 'v_lshl_add_u32 v4, v5, 4, v4')
    e(f's_mul_i32 s38, s35, {32*1152}', 's_lshl_b32 s39, s36, 6', 's_add_u32 s38, s38, s39')
    e('buffer_store_dwordx4 v[120:123], v4, s[8:11], s38 offen', 'buffer_store_dwordx4 v[124:127], v4, s[8:11], s38 offen offset:32')
    tl_end(e, 2)
    e.lab('k3_end'); e('s_endpgm')
```

```python
from common import *
QSC = '0x3eae1b5d'
import struct
def fbits(x): return '0x%08x' % struct.unpack('<I', struct.pack('<f', x))[0]
QSC = fbits(18**-0.5 * 1.4426950408889634)
ACC = 128
SLOT = 30720; NS = 5; GOFF = SLOT*NS
VXO, VWO, VSO, VXR, VWR, VSP, VG, VL16 = 4, 6, 8, 10, 12, 13, 14, 15
LP = 16
SETA, SETB = 24, 48
def k1_role(e, role):
    tiles = {'ffn': ['ffn']*3, 'qkl': ['qk']*3, 'qkg': ['qk']*3, 'mix': ['qk', 'v', 'v'], 'vl': ['v']*3}[role]
    sp = {'qkl': 'qkl', 'qkg': 'gate', 'vl': 'vl'}.get(role)
    RS = 384; wstride = 9216 if role == 'ffn' else 3456
    spd = sp in ('qkl', 'vl')
    for i in range(2):
        e(f's_add_u32 s4, s24, {8*i}', 's_lshl_b32 s4, s4, 6', 'v_add_u32 v64, s4, v1')
        e('s_mov_b32 s5, 2731', 'v_mul_lo_u32 v65, v64, s5', 'v_lshrrev_b32 v65, 16, v65')
        e('v_mul_u32_u24 v66, 24, v65', 'v_sub_u32 v66, v64, v66')
        e('v_lshlrev_b32 v67, 1, v65', 'v_and_b32 v67, 4, v67', 'v_xor_b32 v66, v66, v67')
        if role == 'ffn':
            e('v_lshlrev_b32 v66, 4, v66', 'v_mul_u32_u24 v65, 9216, v65', 's_mul_i32 s4, s26, 384', f'v_add3_u32 v{VWO+i}, v65, v66, s4')
        else:
            e('v_lshrrev_b32 v67, 1, v66', 'v_mul_u32_u24 v67, 36, v67', 'v_and_b32 v66, 1, v66', 'v_lshl_add_u32 v66, v66, 4, v67')
            e('v_mul_u32_u24 v65, 3456, v65', 's_mul_i32 s4, s31, 72', f'v_add3_u32 v{VWO+i}, v65, v66, s4')
    if spd:
        e('s_lshl_b32 s4, s24, 2', 'v_lshrrev_b32 v64, 4, v1', 'v_add_u32 v64, s4, v64', 'v_mul_u32_u24 v64, 3456, v64')
        e('v_and_b32 v65, 15, v1', 'v_mul_u32_u24 v65, 36, v65', 's_mul_i32 s4, s36, 576', 's_add_u32 s4, s4, 32', f'v_add3_u32 v{VSO}, v64, v65, s4')
    def dma_list():
        L = []
        for i in range(2): L.append([f's_add_u32 m0, s30, s33' if i == 0 else f's_add_u32 m0, m0, 1024', 's_nop 0', f'buffer_load_dwordx4 v{VXO+i}, s[8:11], s28 offen lds'])
        L.append(['s_add_u32 m0, s30, s34', 's_nop 0', f'buffer_load_dwordx4 v{VWO}, s[12:15], s29 offen lds'])
        sk = e.u('w2')
        L.append(['s_cmp_ge_u32 s24, 4', f's_cbranch_scc1 {sk}', 's_add_u32 m0, m0, 8192', 's_nop 0', f'buffer_load_dwordx4 v{VWO+1}, s[12:15], s29 offen lds', ('lab', sk)])
        if spd: L.append(['s_add_u32 m0, s30, s37', 's_nop 0', f'buffer_load_dword v{VSO}, s[12:15], s29 offen lds'])
        L[-1] = L[-1] + ['s_add_u32 s28, s28, 64', f's_add_u32 s29, s29, {32*wstride}', 's_add_u32 s38, s38, 1', 's_cmp_ge_u32 s38, 18', 's_cselect_b32 s28, 0x40000000, s28', 's_cselect_b32 s29, 0x40000000, s29',
                         f's_add_u32 s30, s30, {SLOT}', f's_cmp_eq_u32 s30, {SLOT*NS}', 's_cselect_b32 s30, 0, s30']
        return L
    def em(d):
        for x in d:
            if isinstance(x, tuple): e.lab(x[1])
            else: e(x)
    PER = 4 if spd else 3
    e('s_lshl_b32 s33, s24, 11', 's_lshl_b32 s34, s24, 10', 's_add_u32 s34, s34, 16384', 's_lshl_b32 s37, s24, 8', f's_add_u32 s37, s37, {16384+12288}', 's_mov_b32 s28, 0', 's_mov_b32 s29, 0', 's_mov_b32 s30, 0', 's_mov_b32 s38, 0')
    if role == 'ffn':
        e('v_lshrrev_b32 v64, 5, v1', 'v_lshlrev_b32 v64, 3, v64', 's_mul_i32 s4, s26, 384', 's_lshl_b32 s5, s39, 6', 's_add_u32 s4, s4, s5', 'v_add_u32 v64, s4, v64')
        for t in range(3):
            for g in range(4): e(f'buffer_load_dwordx2 v[{72+8*t+2*g}:{73+8*t+2*g}], v64, s[20:23], 0 offen offset:{128*t+16*g}')
    if sp == 'gate':
        e('s_cmp_lg_u32 s24, 0', 's_cbranch_scc1 k1_nog', f's_mov_b32 m0, {GOFF}', 'v_lshlrev_b32 v64, 4, v1', 'buffer_load_dwordx4 v64, s[20:23], 0 offen lds',
          f's_mov_b32 m0, {GOFF+1024}', 'v_add_u32 v64, 1024, v64', 'buffer_load_dwordx4 v64, s[20:23], 0 offen lds')
        e.lab('k1_nog')
        e('v_lshrrev_b32 v64, 5, v1', 'v_lshlrev_b32 v64, 4, v64', f'v_add_u32 v{VG}, {GOFF}, v64')
    for st in range(NS-1):
        for d in dma_list(): em(d)
    NPF = 0
    if role != 'ffn' and not os.environ.get('NOPF'):
        NPF = 1
        e('s_lshr_b32 s4, s2, 3', 's_mul_i32 s4, s4, 486', 'v_add_u32 v64, s4, v0', 'v_lshlrev_b32 v64, 7, v64', 'v_mov_b32 v65, 0x7f000000', 'v_cmp_gt_u32 vcc, 486, v0')
        e('v_cndmask_b32 v64, v65, v64, vcc', 'buffer_load_dword v97, v64, s[12:15], 0 offen')
    if role == 'ffn' and os.environ.get('PF2', '0') == '1':
        NPF = 1
        e('s_lshl_b32 s4, s26, 3', 's_add_u32 s4, s4, s25', 's_mul_i32 s4, s4, 27648', 'v_lshlrev_b32 v64, 6, v0', 'buffer_load_dword v97, v64, s[44:47], s4 offen')
    e('v_and_b32 v64, 15, v1', 'v_lshrrev_b32 v65, 5, v1', 'v_lshrrev_b32 v66, 2, v64', 'v_lshl_add_u32 v66, v65, 3, v66')
    e('v_bfe_u32 v67, v1, 4, 1', 'v_lshlrev_b32 v67, 5, v67', 'v_and_b32 v68, 3, v64', 'v_lshl_add_u32 v67, v68, 3, v67')
    e('v_mul_u32_u24 v68, 64, v66', f'v_add_u32 v{LP+3}, v68, v67', f'v_add_u32 v{LP+3}, {16384+12288}, v{LP+3}')
    e(f'v_mul_u32_u24 v66, {RS}, v66', 'v_add_u32 v66, v66, v67', 'v_bfe_u32 v67, v1, 3, 1', 'v_xor_b32 v67, s39, v67', 'v_lshl_add_u32 v66, v67, 6, v66', f'v_add_u32 v{LP+2}, 16384, v66')
    for s in range(2):
        e('v_and_b32 v64, 31, v1', 'v_bfe_u32 v65, v1, 2, 2', 'v_lshrrev_b32 v66, 5, v1', f'v_add_u32 v66, {2*s}, v66', 'v_xor_b32 v65, v65, v66')
        e('v_lshlrev_b32 v64, 6, v64', 'v_lshl_add_u32 v64, v65, 4, v64', 's_lshr_b32 s4, s24, 1', 's_lshl_b32 s4, s4, 12', f'v_add_u32 v{LP+s}, s4, v64')
    nacc = 6 + (1 if sp else 0)
    if role != 'ffn':
        for r in range(16*nacc): e(f'v_mov_b32 v{ACC+r}, 0')
    e(f's_waitcnt vmcnt({PER*(NS-2)+NPF})')
    if role == 'ffn':
        for t in range(3):
            for g in range(4):
                for x in range(2):
                    r = 72+8*t+2*g+x
                    for m in range(2): e(f'v_lshlrev_b32 v{ACC+16*(2*t+m)+4*g+2*x}, 16, v{r}', f'v_and_b32 v{ACC+16*(2*t+m)+4*g+2*x+1}, 0xffff0000, v{r}')
    def addr():
        e(f'v_add_u32 v{VXR}, s40, v{LP}', f'v_add_u32 v{VXR+1}, s40, v{LP+1}', f'v_add_u32 v{VWR}, s40, v{LP+2}')
        if spd: e(f'v_add_u32 v{VSP}, s40, v{LP+3}')
    def reads(S, s):
        L = []
        for m in range(2): L.append(f'ds_read_b128 {vr(S+4*m,4)}, v{VXR+s} offset:{2048*m}')
        if not os.environ.get('NORD'):
            for t in range(3):
                for kk in range(2): L.append(f'ds_read_b64_tr_b16 {vr(S+8+4*t+2*kk,2)}, v{VWR} offset:{(16*s+4*kk)*RS+128*t}')
            if spd:
                for kk in range(2): L.append(f'ds_read_b64_tr_b16 {vr(S+20+2*kk,2)}, v{VSP} offset:{(16*s+4*kk)*64}')
            if sp == 'gate': L.append(f'ds_read_b128 {vr(S+20,4)}, v{VG} offset:{32*s}')
        return L
    def mfmas(S):
        L = []
        for t in range(3):
            for m in range(2):
                a, b = (S+4*m, S+8+4*t) if tiles[t] == 'v' else (S+8+4*t, S+4*m)
                L.append(f'v_mfma_f32_32x32x16_bf16 {vr(ACC+16*(2*t+m),16)}, {vr(a,4)}, {vr(b,4)}, {vr(ACC+16*(2*t+m),16)}')
        if sp:
            for wn in range(2):
                pass
        return L
    def special(S):
        if not sp: return
        l0, l1 = e.u('sp0'), e.u('sp1')
        e('s_cmp_eq_u32 s39, 0', f's_cbranch_scc1 {l0}')
        for wn in (1, 0):
            if wn == 0: e.lab(l0)
            a, b = (S+4*wn, S+20) if sp == 'vl' else (S+20, S+4*wn)
            e(f'v_mfma_f32_32x32x16_bf16 {vr(ACC+96,16)}, {vr(a,4)}, {vr(b,4)}, {vr(ACC+96,16)}')
            if wn == 1: e(f's_branch {l1}')
        e.lab(l1)
    def spm(S, wn):
        a, b = (S+4*wn, S+20) if sp == 'vl' else (S+20, S+4*wn)
        return f'v_mfma_f32_32x32x16_bf16 {vr(ACC+96,16)}, {vr(a,4)}, {vr(b,4)}, {vr(ACC+96,16)}'
    def half(S, R, D, wn=None):
        M = [] if os.environ.get('NOMFMA') else mfmas(S)
        if sp: M.insert(int(os.environ.get('SPOS', '6')), spm(S, wn))
        R = list(R); D = list(D)
        for x in R[:4]: e(x)
        R = R[4:]
        for i in range(7 if sp else 6):
            if M: e(M[i])
            for x in R[:2]: e(x)
            R = R[2:]
            if D: em(D.pop(0))
        for x in R: e(x)
        for d in D: em(d)
    e('s_barrier', 's_mov_b32 s40, 0')
    addr()
    for x in reads(SETA, 0): e(x)
    e('s_mov_b32 s27, 0')
    def loop(wn):
        lp = e.u('k1loop'); e.lab(lp)
        e('s_waitcnt lgkmcnt(0)')
        half(SETA, reads(SETB, 1), [] if os.environ.get('NODMA') else dma_list(), wn)
        e('s_waitcnt lgkmcnt(0)', f's_waitcnt vmcnt({PER*(NS-2)})', 's_barrier')
        e(f's_add_u32 s40, s40, {SLOT}', f's_cmp_eq_u32 s40, {SLOT*NS}', 's_cselect_b32 s40, 0, s40')
        addr()
        if sp == 'gate': e(f'v_add_u32 v{VG}, 64, v{VG}')
        half(SETB, reads(SETA, 0), [], wn)
        e('s_add_u32 s27, s27, 1', 's_cmp_lt_u32 s27, 18', f's_cbranch_scc1 {lp}')
    if sp:
        l0, l1 = e.u('lw0'), e.u('lw1')
        e('s_cmp_eq_u32 s39, 0', f's_cbranch_scc1 {l0}')
        loop(1); e(f's_branch {l1}'); e.lab(l0); loop(0); e.lab(l1)
    else: loop(None)
    e('s_waitcnt lgkmcnt(0)', 's_nop 15', 's_nop 7')
    prof_mark(e, 0)
    items = [(tiles[t], ACC+16*(2*t+m), t, m) for t in range(3) for m in range(2)]
    if sp: items.append((sp, ACC+96, 0, 0))
    for k, (ty, A, t, m) in enumerate(items):
        P = 64 + 8*(k % 4)
        if ty == 'ffn':
            for r in range(16): e(f'v_max_f32 v{96+r}, 0, v{A+r}')
            for r in range(0, 16, 2): e(f'v_pk_mul_f32 v[{A+r}:{A+r+1}], v[{96+r}:{97+r}], v[{96+r}:{97+r}]')
            pack_swap(e, A, P)
            e(f's_add_u32 s4, s41, {m}', f's_mul_i32 s4, s4, {288*1024}', f's_mul_i32 s5, s26, {12*1024}', 's_add_u32 s4, s4, s5', 's_lshl_b32 s5, s39, 11', 's_add_u32 s4, s4, s5', f's_add_u32 s4, s4, {HF+4*t*1024}')
            e(f'buffer_store_dwordx4 {vr(P,4)}, v{VL16}, s[16:19], s4 offen {os.environ.get("HST","sc0 sc1")}', f'buffer_store_dwordx4 {vr(P+4,4)}, v{VL16}, s[16:19], s4 offen offset:1024 {os.environ.get("HST","sc0 sc1")}')
        elif ty == 'qk':
            e(f's_add_u32 s5, s31, {2*t}', 's_add_u32 s5, s5, s39', 's_cmp_lt_u32 s5, 16', f's_cselect_b32 s6, {QSC}, 1.0')
            for r in range(16): e(f'v_mul_f32 v{A+r}, s6, v{A+r}')
            pack_swap(e, A, P)
            e(f's_add_u32 s4, s41, {m}', f's_cselect_b32 s7, 0, 0', 's_cmp_lt_u32 s5, 16', f's_cselect_b32 s6, 1024, {KVT}', 's_mul_i32 s4, s4, s6', f's_cselect_b32 s6, 65536, {KVH}', f's_cselect_b32 s7, {QF}, {KV-32*KVH}',
              's_mul_i32 s5, s5, s6', 's_lshl_b32 s5, s5, 1', 's_add_u32 s4, s4, s5', 's_add_u32 s4, s4, s7', 's_add_u32 s5, s4, s6')
            e(f'buffer_store_dwordx4 {vr(P,4)}, v{VL16}, s[16:19], s4 offen {os.environ.get("QST","sc0 sc1")}', f'buffer_store_dwordx4 {vr(P+4,4)}, v{VL16}, s[16:19], s5 offen {os.environ.get("QST","sc0 sc1")}')
        elif ty in ('v', 'vl'):
            for g in range(4):
                for x in range(2): e(f'v_cvt_pk_bf16_f32 v{P+2*g+x}, v{A+4*g+2*x}, v{A+4*g+2*x+1}')
            if ty == 'v':
                e('v_bfe_u32 v100, v1, 4, 1', f'v_mul_u32_u24 v100, {KVH}, v100', 'v_and_b32 v101, 47, v1', 'v_lshl_add_u32 v100, v101, 4, v100')
                e(f's_add_u32 s5, s31, {2*t}', 's_add_u32 s5, s5, s39', 's_sub_u32 s5, s5, 32', f's_mul_i32 s5, s5, {2*KVH}', f's_add_u32 s4, s41, {m}', f's_mul_i32 s4, s4, {KVT}')
            else:
                e('v_bfe_u32 v100, v1, 1, 4', f'v_mul_u32_u24 v100, {KVH}, v100', 'v_and_b32 v101, 33, v1', 'v_add_u32 v101, 16, v101', 'v_lshl_add_u32 v100, v101, 4, v100')
                e('s_sub_u32 s5, s36, 4', f's_mul_i32 s5, s5, {16*KVH}', f's_mul_i32 s4, s32, {KVT}')
            e('s_add_u32 s4, s4, s5', f's_add_u32 s4, s4, {KV+1024}')
            e(f'buffer_store_dwordx4 {vr(P,4)}, v100, s[16:19], s4 offen {os.environ.get("QST","sc0 sc1")}', f'buffer_store_dwordx4 {vr(P+4,4)}, v100, s[16:19], s4 offen offset:1024 {os.environ.get("QST","sc0 sc1")}')
            if ty == 'vl':
                e('v_bfe_u32 v102, v1, 1, 4', f'v_mul_u32_u24 v102, {KVH}, v102', 'v_and_b32 v101, 32, v1', 'v_add_u32 v101, 18, v101', 'v_lshl_add_u32 v102, v101, 4, v102')
                for x in range(4): e(f'v_mov_b32 v{104+x}, 0x3f803f80')
                e('buffer_store_dwordx4 v[104:107], v102, s[16:19], s4 offen', 'buffer_store_dwordx4 v[104:107], v102, s[16:19], s4 offen offset:1024')
        elif ty == 'qkl':
            e('s_cmp_lt_u32 s36, 2', f's_cselect_b32 s6, {QSC}, 1.0')
            for r in range(16): e(f'v_mul_f32 v{A+r}, s6, v{A+r}')
            for g in range(4):
                for x in range(2): e(f'v_cvt_pk_bf16_f32 v{P+2*g+x}, v{A+4*g+2*x}, v{A+4*g+2*x+1}')
            e('s_cmp_lt_u32 s36, 2', f's_cselect_b32 s7, 8192, {KVH}', f's_cselect_b32 s5, 128, {KVT}', f's_cselect_b32 s6, {Q2}, {KV-32*KVH+3072}', 's_mul_i32 s4, s32, s5', 's_add_u32 s4, s4, s6', 's_mul_i32 s5, s36, s7', 's_lshl_b32 s5, s5, 4', 's_add_u32 s4, s4, s5')
            e('v_lshrrev_b32 v100, 5, v1', 's_lshl_b32 s5, s7, 1', 'v_mul_lo_u32 v100, v100, s5', 'v_and_b32 v101, 31, v1', 'v_lshl_add_u32 v100, v101, 2, v100')
            for g in range(4):
                for x in range(2):
                    e(f's_mul_i32 s5, s7, {4*g+x}', 's_add_u32 s5, s5, s4', f'buffer_store_dword v{P+2*g+x}, v100, s[16:19], s5 offen')
        elif ty == 'gate':
            e(f'v_mul_f32 v100, 0xbfb8aa3b, v{A}', 'v_exp_f32 v100, v100', 's_nop 0', 'v_add_f32 v100, 1.0, v100', 'v_rcp_f32 v100, v100')
            e('v_and_b32 v101, 31, v1', 'v_lshlrev_b32 v101, 2, v101', 's_lshl_b32 s4, s32, 7', f's_add_u32 s4, s4, {GT}', 's_nop 0', 'buffer_store_dword v100, v101, s[16:19], s4 offen')
        e('s_nop 1')
    e('s_waitcnt vmcnt(0)') if PROF else None
    if PROF: e('s_lshl_b32 s77, s25, 6', 's_add_u32 s77, s77, s26', 's_lshr_b32 s77, s77, 0')
    e('s_mov_b32 s77, s2') if PROF else None
    if PROF: e('s_waitcnt lgkmcnt(0)', 's_lshl_b32 s76, s76, 24', 's_add_u32 s80, s80, s76', 's_sub_u32 s80, s80, s76', 's_sub_u32 s80, s80, s76')
    prof_end(e, 's77', 1, 2) if os.environ.get('PK','1')=='1' else None
    tl_end(e, 0)
    e('s_endpgm')

def k1(e):
    header(e, 'k1_kernel')
    e('s_cmp_ge_u32 s2, 256', 's_cbranch_scc1 k1_end')
    e('s_and_b32 s4, s2, 7', 's_lshr_b32 s5, s2, 3')
    e('s_and_b32 s6, s4, 1', 's_lshl_b32 s6, s6, 2', 's_and_b32 s7, s5, 3', 's_add_u32 s25, s6, s7')
    e('s_lshr_b32 s6, s4, 1', 's_lshl_b32 s6, s6, 3', 's_lshr_b32 s7, s5, 2', 's_add_u32 s26, s6, s7')
    if os.environ.get('SAME'): e('s_mov_b32 s25, 0', 's_and_b32 s26, s26, 1')
    if PROF: e('s_getreg_b32 s76, hwreg(HW_REG_XCC_ID)', 's_and_b32 s76, s76, 15')
    e('v_lshrrev_b32 v2, 6, v0', 'v_and_b32 v1, 63, v0', 's_nop 0', 'v_readfirstlane_b32 s24, v2', f'v_lshlrev_b32 v{VL16}, 4, v1')
    prof_start(e); tl_start(e)
    srd(e, 16, 88, WSEND); srd(e, 44, 48, 5308416)
    e('s_lshl_b32 s32, s25, 3', 's_add_u32 s32, s32, s24')
    e('s_cmp_ge_u32 s26, 24', 's_cbranch_scc1 k1_qkv')
    srd(e, 8, 0, 2359296); srd(e, 12, 32, 5308416); srd(e, 20, 40, 9216)
    e('s_branch k1_go')
    e.lab('k1_qkv')
    srd(e, 8, 0, 2359296); srd(e, 12, 8, 1990656); srd(e, 20, 64, 1152)
    e.lab('k1_go')
    e('s_and_b32 s39, s24, 1', 's_lshr_b32 s41, s24, 1', 's_lshl_b32 s41, s41, 1', 's_lshl_b32 s4, s25, 3', 's_add_u32 s41, s41, s4')
    for i in range(2):
        e('v_lshrrev_b32 v64, 2, v1', f'v_add_u32 v64, {16*i}, v64', 'v_bfe_u32 v65, v64, 2, 2', 'v_and_b32 v66, 3, v1', 'v_xor_b32 v65, v65, v66')
        e('s_lshl_b32 s4, s32, 5', 'v_add_u32 v64, s4, v64', 'v_mul_u32_u24 v64, 1152, v64', f'v_lshl_add_u32 v{VXO+i}, v65, 4, v64')
    e('s_waitcnt lgkmcnt(0)')
    for d in (8, 12, 16, 20, 44): fix_srd(e, d)
    e('s_sub_u32 s35, s26, 24', 's_mul_i32 s31, s35, 6')
    e('s_sub_u32 s4, s35, 2', 's_cmp_lt_u32 s35, 4', 's_cselect_b32 s36, s35, s4')
    e('s_cmp_lt_u32 s26, 24', 's_cbranch_scc1 k1_ffn', 's_cmp_lt_u32 s26, 28', 's_cbranch_scc1 k1_qkl', 's_cmp_eq_u32 s26, 28', 's_cbranch_scc1 k1_qkg', 's_cmp_eq_u32 s26, 29', 's_cbranch_scc1 k1_mix', 's_branch k1_vl')
    for r in ('ffn', 'qkl', 'qkg', 'mix', 'vl'):
        e.lab('k1_' + r); k1_role(e, r)
    e.lab('k1_end'); e('s_endpgm')
```

```python
from common import *
import os
NW3 = 192
LAUNCH = f'; @launch kernel=k3_kernel grid=({NW3},1,1) block=(384,1,1) lds=147456'
NV = 256
def k3(e):
    header(e, 'k3_kernel')
    e(f's_cmp_ge_u32 s2, {NW3}', 's_cbranch_scc1 k3_end')
    e('s_and_b32 s4, s2, 7', 's_lshr_b32 s5, s2, 3', 's_and_b32 s6, s5, 3', 's_lshl_b32 s4, s4, 2', 's_add_u32 s25, s4, s6', 's_lshr_b32 s26, s5, 2')
    e('v_lshrrev_b32 v2, 6, v0', 'v_and_b32 v1, 63, v0', 's_nop 0', 'v_readfirstlane_b32 s24, v2', 'v_lshlrev_b32 v3, 4, v1')
    tl_start(e)
    srd(e, 16, 88, WSEND); srd(e, 8, 72, 2048*576*2); srd(e, 12, 56, 1152)
    e('s_waitcnt lgkmcnt(0)')
    for d in (8, 12, 16): fix_srd(e, d)
    e('s_mul_i32 s27, s24, 6144', f's_mul_i32 s28, s25, {2*36*1024}', 's_add_u32 s28, s28, s27', f's_add_u32 s28, s28, {OF}')
    e(f's_mul_i32 s29, s26, {3*36*1024}', 's_add_u32 s29, s29, s27', f's_add_u32 s29, s29, {WOF}')
    e(f's_add_u32 s30, s28, {36*1024}', f's_add_u32 s31, s29, {36*1024}', f's_add_u32 s32, s29, {72*1024}')
    FR = 40; ACC = 160
    SB = (28, 30, 29, 31, 32)
    for i in range(6):
        if i == 4:
            for sb in SB: e(f's_add_u32 s{sb}, s{sb}, 4096')
        for q, sb in enumerate(SB):
            e(f'buffer_load_dwordx4 {vr(FR+20*i+4*q,4)}, v3, s[16:19], s{sb} offen offset:{1024*(i%4)}')
    e('s_cmp_ge_u32 s24, 3', 's_cselect_b32 s33, 1, 0', 's_mul_i32 s34, s33, 3', 's_sub_u32 s34, s24, s34', 's_lshl_b32 s35, s25, 1', 's_add_u32 s35, s35, s33', 's_mul_i32 s36, s26, 3', 's_add_u32 s36, s36, s34')
    e('s_mul_i32 s37, s35, 18', 's_add_u32 s37, s37, s36', 's_lshl_b32 s37, s37, 11', f's_add_u32 s37, s37, {PART}')
    e('v_and_b32 v4, 31, v1', 'v_lshlrev_b32 v4, 2, v4', 's_lshl_b32 s38, s35, 7', f's_add_u32 s38, s38, {GT}')
    e('v_lshrrev_b32 v5, 5, v1', 'v_lshlrev_b32 v5, 3, v5', 's_lshl_b32 s39, s36, 6')
    def mm(i):
        F = FR+20*i
        for m in range(2):
            for n in range(3):
                A = ACC+16*(3*m+n)
                e(f'v_mfma_f32_32x32x16_bf16 {vr(A,16)}, {vr(F+8+4*n,4)}, {vr(F+4*m,4)}, {vr(A,16)}')
    if not os.environ.get('K3NEW'):
        for r in range(96): e(f'v_mov_b32 v{ACC+r}, 0')
        e('s_nop 1')
        for i in range(3):
            e(f's_waitcnt vmcnt({5*(5-i)})'); mm(i)
        e('s_nop 7')
        for sp in range(NSPLIT):
            e(f'buffer_load_dwordx4 {vr(40+8*sp,4)}, v3, s[16:19], s37 offen', f'buffer_load_dwordx4 {vr(44+8*sp,4)}, v3, s[16:19], s37 offen offset:1024')
            if sp < NSPLIT-1: e(f's_add_u32 s37, s37, {64*18*2048}')
        for g in range(4): e(f'buffer_load_dwordx2 v[{16+2*g}:{17+2*g}], v5, s[12:15], s39 offen offset:{16*g}')
        e('buffer_load_dword v6, v4, s[16:19], s38 offen')
        for i in range(3, 6):
            e(f's_waitcnt vmcnt({5*(5-i)+15})'); mm(i)
    else:
        e('s_mul_i32 s41, s24, 24576')
        for sp in range(NSPLIT):
            e(f's_add_u32 m0, s41, {2048*sp}', 's_nop 0', f'buffer_load_dwordx4 v3, s[16:19], s37 offen lds', f'buffer_load_dwordx4 v3, s[16:19], s37 offen offset:1024 lds')
            if sp < NSPLIT-1: e(f's_add_u32 s37, s37, {64*18*2048}')
        for g in range(4): e(f'buffer_load_dwordx2 v[{16+2*g}:{17+2*g}], v5, s[12:15], s39 offen offset:{16*g}')
        e('buffer_load_dword v6, v4, s[16:19], s38 offen')
        for r in range(96): e(f'v_mov_b32 v{ACC+r}, 0')
        e('s_nop 1')
        for i in range(6):
            e(f's_waitcnt vmcnt({5*(5-i)+15})'); mm(i)
        e('v_add_u32 v7, s41, v3', 's_waitcnt vmcnt(0)')
        for sp in range(NSPLIT):
            for h in range(2): e(f'ds_read_b128 {vr(40+8*sp+4*h,4)}, v7 offset:{2048*sp+1024*h}')
        e('s_waitcnt lgkmcnt(0)', 's_barrier')
    e('s_nop 15', 's_nop 7')
    e(f's_mul_i32 s40, s24, 4096', 'v_add_u32 v7, s40, v3')
    for t in range(6):
        if t == 2 or t == 4: e(f'v_add_u32 v7, {2*24576}, v7')
        for g in range(4): e(f'ds_write_b128 v7, {vr(ACC+16*t+4*g,4)} offset:{24576*(t%2)+1024*g}')
    e('s_waitcnt lgkmcnt(0)', 's_barrier')
    e('s_mul_i32 s40, s24, 24576', 'v_add_u32 v7, s40, v3')
    for w in range(6):
        for g in range(4): e(f'ds_read_b128 {vr(160+16*w+4*g,4)}, v7 offset:{4096*w+1024*g}')
    e('s_waitcnt vmcnt(0)')
    R = 100
    for half in range(2):
        for x in range(4):
            i = 8*half+2*x
            g, j = i//4, i % 4
            e(f'v_lshlrev_b32 v{R+i}, 16, v{16+2*g+j//2}', f'v_and_b32 v{R+i+1}, 0xffff0000, v{16+2*g+j//2}')
            for sp in range(NSPLIT):
                r = 40+8*sp+4*half+x
                e(f'v_lshlrev_b32 v8, 16, v{r}', f'v_and_b32 v9, 0xffff0000, v{r}', f'v_add_f32 v{R+i}, v{R+i}, v8', f'v_add_f32 v{R+i+1}, v{R+i+1}, v9')
    e('v_sub_f32 v10, 1.0, v6', 's_waitcnt lgkmcnt(0)')
    for i in range(16):
        for w in range(1, 6): e(f'v_add_f32 v{160+i}, v{160+i}, v{160+16*w+i}')
        e(f'v_mul_f32 v{R+i}, v10, v{R+i}', f'v_fma_f32 v{160+i}, v6, v{160+i}, v{R+i}')
    pack_swap(e, 160, 120)
    e('s_nop 1')
    for x in range(4): e(f'v_permlane16_swap_b32 v{120+x}, v{124+x}')
    e('v_and_b32 v4, 15, v1', 'v_mul_u32_u24 v4, 1152, v4', 'v_lshrrev_b32 v5, 5, v1', 'v_lshl_add_u32 v4, v5, 4, v4', 'v_bfe_u32 v5, v1, 4, 1', 'v_lshl_add_u32 v4, v5, 5, v4')
    e(f's_mul_i32 s38, s35, {32*1152}', 's_lshl_b32 s39, s36, 6', 's_add_u32 s38, s38, s39', f's_add_u32 s39, s38, {16*1152}', 's_nop 1')
    e('buffer_store_dwordx4 v[120:123], v4, s[8:11], s38 offen', 'buffer_store_dwordx4 v[124:127], v4, s[8:11], s39 offen')
    tl_end(e, 2)
    e.lab('k3_end'); e('s_endpgm')
```

```python
from common import *
import os
NATT, NG2, NPREP = 256, 240, 9
LAUNCH = f'; @launch kernel=k2_kernel grid=({NATT+NG2+NPREP},1,1) block=(256,1,1) lds=61440'
NV = 256
def em(e, d):
    for x in d:
        if isinstance(x, tuple): e.lab(x[1])
        else: e(x)

def attn(e):
    TS = 3328; ST = 4*TS; NSL = 4
    S = [[0, 16], [32, 48]]
    B = 12
    S = [[B, B+16], [B+32, B+48]]
    O = [76, 92]; P = [108, 116]; M = [124, 140]; Q = [156, 164]; K = [172, 180]; V = [188, 196]
    T = 204
    e('s_and_b32 s4, s2, 7', 's_lshr_b32 s5, s2, 3', 's_lshl_b32 s4, s4, 2', 's_and_b32 s6, s5, 3', 's_add_u32 s25, s4, s6', 's_lshr_b32 s26, s5, 2')
    e('s_lshl_b32 s27, s26, 3', 's_lshl_b32 s4, s24, 1', 's_add_u32 s27, s27, s4')
    e('v_and_b32 v4, 31, v1', 'v_lshlrev_b32 v4, 2, v4')
    e('v_lshlrev_b32 v5, 2, v1')
    e('s_lshl_b32 s4, s25, 16', 's_lshl_b32 s5, s27, 10', 's_add_u32 s4, s4, s5', f's_add_u32 s4, s4, {QF}')
    e('s_lshl_b32 s6, s25, 13', 's_lshl_b32 s5, s27, 7', 's_add_u32 s6, s6, s5', f's_add_u32 s6, s6, {Q2}')
    for q in range(2):
        e(f'buffer_load_dwordx4 {vr(Q[q],4)}, v3, s[16:19], s4 offen offset:{1024*q}', f'buffer_load_dword v{Q[q]+4}, v4, s[16:19], s6 offen offset:{128*q}')
        for r in range(1, 4): e(f'v_mov_b32 v{Q[q]+4+r}, 0', f'v_mov_b32 v{K[q]+4+r}, 0')
        for r in range(16): e(f'v_mov_b32 v{M[q]+r}, 0')
    e(f's_mul_i32 s28, s25, {KVH}', f's_mul_i32 s31, s24, {TS}', 's_add_u32 s28, s28, s31', f's_add_u32 s28, s28, {KV}')
    e('s_mov_b32 s44, 0', 's_mov_b32 s45, 0x07060302')
    e.lab('att_pass')
    e('s_mov_b32 s33, s28')
    def dma(sl):
        return [f's_add_u32 m0, s31, {ST*sl}', 'buffer_load_dwordx4 v3, s[16:19], s33 offen lds', 'buffer_load_dwordx4 v3, s[16:19], s33 offen offset:1024 lds', 'buffer_load_dwordx4 v3, s[16:19], s33 offen offset:2048 lds',
                'buffer_load_dword v4, s[16:19], s33 offen offset:3072 lds', f's_add_u32 s33, s33, {ST}']
    for st in range(3):
        d = dma(st); e(d[0], 's_nop 0', *d[1:])
    for q in range(2):
        for r in range(16): e(f'v_mov_b32 v{O[q]+r}, 0')
        for r in range(8): e(f'v_mov_b32 v{P[q]+r}, 0')
    for r in range(8): e(f'v_mov_b32 v{V[1]+r}, 0')
    def rdK(par, tl): return [f'ds_read_b128 {vr(K[par],4)}, v3 offset:{TS*tl}', f'ds_read_b32 v{K[par]+4}, v5 offset:{TS*tl+3072}']
    def rdV(par, tl): return [f'ds_read_b128 {vr(V[par],4)}, v3 offset:{TS*tl+1024}', f'ds_read_b128 {vr(V[par]+4,4)}, v3 offset:{TS*tl+2048}']
    def qk(par, q, left):
        c = vr(S[par][q], 16) if left else vr(M[q], 16)
        if left and os.environ.get('X8', '0') == '1':
            return f'v_mfma_f32_32x32x8bf16_1k {vr(S[par][q],16)}, {vr(K[par]+4,2)}, {vr(Q[q]+4,2)}, {c}'
        return f'v_mfma_f32_32x32x16_bf16 {vr(S[par][q],16)}, {vr(K[par]+4*left,4)}, {vr(Q[q]+4*left,4)}, {c}'
    def pv(par, q, s): return f'v_mfma_f32_32x32x16_bf16 {vr(O[q],16)}, {vr(V[par]+4*s,4)}, {vr(P[q]+4*s,4)}, {vr(O[q],16)}'
    def perm(par, q, r0): return [f'v_perm_b32 v{P[q]+r0//2+x}, v{S[par][q]+r0+2*x+1}, v{S[par][q]+r0+2*x}, s45' for x in range(2)]
    for r in range(12, 16): e(f'v_mov_b32 v{S[1][1]+r}, 0')
    e('s_waitcnt vmcnt(8)', 's_barrier', 'v_cmp_gt_u32 vcc, 32, v1')
    for q in range(2): e(f'v_cndmask_b32 v{Q[q]+4}, 0, v{Q[q]+4}, vcc')
    for x in rdK(0, 0) + rdK(1, 1) + rdV(0, 0): e(x)
    e('s_waitcnt lgkmcnt(0)')
    for q in range(2): e(qk(0, q, 0))
    for q in range(2): e(qk(0, q, 1))
    e('s_nop 15', 's_mov_b32 s41, 0')
    prof_mark(e, 0)
    lp = 'att_loop'; e.lab(lp)
    for gt in range(16):
        tl = gt & 3; sl = gt >> 2
        par = gt & 1; nx = par ^ 1
        X = []
        if tl == 2:
            e('s_waitcnt vmcnt(4) lgkmcnt(0)', 's_barrier')
            X = dma((sl+3) & 3)
        R = rdK(par, (gt+2) & 15) + rdV(nx, (gt+1) & 15)
        extra = {0: [R[0]], 1: [R[1], R[2]], 2: [R[3]]}
        for i, x in enumerate(X): extra.setdefault(2+i, []).append(x)
        mf = [pv(nx, 1, 0), pv(nx, 1, 1), qk(nx, 0, 0), qk(nx, 1, 0), pv(par, 0, 0), qk(nx, 0, 1), pv(par, 0, 1), qk(nx, 1, 1)]
        for b in range(8):
            q = b // 4; r0 = 4*(b % 4); sb = S[par][q]
            ex = [f'v_exp_f32 v{sb+r0+r}, v{sb+r0+r}' for r in range(4)]
            pm = perm(nx, 1, 12) if b == 0 else perm(par, (b-1)//4, 4*((b-1) % 4))
            e(ex[0], pm[0], ex[1], pm[1], ex[2])
            if b == 2: e('s_waitcnt lgkmcnt(3)')
            e(mf[b], ex[3])
            for x in extra.get(b, []): e(x)
    e('s_add_u32 s41, s41, 1', 's_cmp_lt_u32 s41, 4', f's_cbranch_scc1 {lp}')
    prof_mark(e, 1)
    e('s_nop 0', *perm(1, 1, 12))
    e('s_nop 1', pv(1, 1, 0), pv(1, 1, 1), 's_waitcnt vmcnt(0) lgkmcnt(0)', 's_nop 15', 's_nop 7')
    e('s_cmp_lg_u32 s44, 0', 's_cbranch_scc1 att_fin')
    if os.environ.get('NOEXP') or os.environ.get('NOCHK'): e('s_branch att_fin')
    for r in range(8):
        for q in range(2):
            e(f'v_mul_f32 v{T+2*q}, 0, v{O[q]}' if r == 0 else f'v_fma_f32 v{T+2*q}, v{O[q]+r}, 0, v{T+2*q}')
    for q in range(2): e(f'v_mul_f32 v{T+2*q+1}, 0, v{O[q]+8}')
    for q in range(2): e(f'v_fma_f32 v{T+2*q+1}, v{O[q]+9}, 0, v{T+2*q+1}')
    e(f'v_add_f32 v{T}, v{T}, v{T+2}', f'v_add_f32 v{T+1}, v{T+1}, v{T+3}')
    e(f'v_cmp_nle_f32 vcc, 0x21800000, v{O[0]+10}', f'v_cmp_nle_f32 s[46:47], 0x21800000, v{O[1]+10}') if False else None
    e(f'v_mov_b32 v{T+2}, 0x21800000', f'v_mov_b32 v{T+3}, 0x5d800000')
    e(f'v_cmp_nle_f32 s[46:47], v{T+2}, v{O[0]+10}', f'v_cmp_nle_f32 s[48:49], v{T+2}, v{O[1]+10}')
    e(f'v_cmp_nge_f32 s[50:51], v{T+3}, v{O[0]+10}', f'v_cmp_nge_f32 s[52:53], v{T+3}, v{O[1]+10}')
    e(f'v_cmp_u_f32 s[54:55], v{T+1}, v{T+1}', f'v_cmp_u_f32 vcc, v{T}, v{T}', 's_nop 4')
    e('s_or_b32 s46, s46, s48', 's_or_b32 s50, s50, s52', 's_or_b32 s46, s46, s54', 's_or_b32 s46, s46, s50', 's_mov_b32 s47, 0', 's_or_b64 s[46:47], s[46:47], vcc')
    e('s_cmp_lg_u64 s[46:47], 0', 's_cselect_b32 s4, 1, 0', f'v_mov_b32 v{T}, s4', 's_lshl_b32 s5, s24, 2', f's_add_u32 s5, s5, {ST*NSL}', f'v_mov_b32 v{T+1}, s5')
    e(f'ds_write_b32 v{T+1}, v{T}', 's_waitcnt lgkmcnt(0)', 's_barrier', f'v_mov_b32 v{T+1}, {ST*NSL}', f'ds_read_b128 {vr(T+4,4)}, v{T+1}', 's_waitcnt lgkmcnt(0)')
    e(f'v_or_b32 v{T+4}, v{T+4}, v{T+5}', f'v_or_b32 v{T+6}, v{T+6}, v{T+7}', f'v_or_b32 v{T+4}, v{T+4}, v{T+6}', 's_nop 1', f'v_readfirstlane_b32 s4, v{T+4}', 's_cmp_eq_u32 s4, 0', 's_cbranch_scc1 att_fin')
    e('s_mov_b32 s44, 1')
    for q in range(2):
        for r in range(16): e(f'v_mov_b32 v{M[q]+r}, 0xff800000')
    e(f's_mul_i32 s33, s25, {KVH}', f's_add_u32 s33, s33, {KV}', 's_mov_b32 s41, 0')
    e.lab('att_mx')
    e(f'buffer_load_dwordx4 {vr(K[0],4)}, v3, s[16:19], s33 offen', f'buffer_load_dword v{K[0]+4}, v4, s[16:19], s33 offen offset:3072', 's_waitcnt vmcnt(0)')
    for q in range(2):
        e(f'v_mfma_f32_32x32x16_bf16 {vr(S[0][q],16)}, {vr(K[0],4)}, {vr(Q[q],4)}, 0', f'v_mfma_f32_32x32x16_bf16 {vr(S[0][q],16)}, {vr(K[0]+4,4)}, {vr(Q[q]+4,4)}, {vr(S[0][q],16)}')
    e('s_nop 15', 's_nop 7')
    for q in range(2):
        for r in range(16): e(f'v_max_f32 v{M[q]}, v{M[q]}, v{S[0][q]+r}')
    e(f's_add_u32 s33, s33, {TS}', 's_add_u32 s41, s41, 1', 's_cmp_lt_u32 s41, 64', 's_cbranch_scc1 att_mx')
    for q in range(2):
        e(f'v_mov_b32 v{T}, v{M[q]}', f'v_mov_b32 v{T+1}, v{M[q]}', 's_nop 1', f'v_permlane32_swap_b32 v{T}, v{T+1}', 's_nop 1', f'v_max_f32 v{T}, v{T}, v{T+1}', f'v_sub_f32 v{T}, 0, v{T}')
        for r in range(16): e(f'v_mov_b32 v{M[q]+r}, v{T}')
    e('s_barrier', 's_branch att_pass')
    e.lab('att_fin')
    for q in range(2):
        e(f'v_mov_b32 v{T}, v{O[q]+10}', f'v_mov_b32 v{T+1}, v{O[q]+10}', 's_nop 1', f'v_permlane32_swap_b32 v{T}, v{T+1}', 's_nop 1', f'v_rcp_f32 v{T}, v{T}', 's_nop 0')
        for r in range(10): e(f'v_mul_f32 v{O[q]+r}, v{T}, v{O[q]+r}')
        for x in range(5): e(f'v_cvt_pk_bf16_f32 v{T+4+x}, v{O[q]+2*x}, v{O[q]+2*x+1}')
        e('s_nop 1')
        for x in range(2): e(f'v_permlane32_swap_b32 v{T+4+x}, v{T+6+x}')
        e(f's_add_u32 s4, s27, {q}', f's_mul_i32 s4, s4, {36*1024}', f's_add_u32 s4, s4, {OF}', 's_lshl_b32 s5, s25, 10', 's_add_u32 s5, s5, s4', 's_nop 0')
        e(f'buffer_store_dwordx4 {vr(T+4,4)}, v3, s[16:19], s5 offen {os.environ.get("OST","sc0 sc1")}')
        e('s_lshr_b32 s5, s25, 3', 's_add_u32 s5, s5, 32', 's_lshl_b32 s5, s5, 10', 's_add_u32 s4, s4, s5', 's_bfe_u32 s5, s25, 0x10002', 's_lshl_b32 s5, s5, 9', 's_add_u32 s4, s4, s5',
          's_and_b32 s5, s25, 3', 's_lshl_b32 s5, s5, 2', 's_add_u32 s4, s4, s5')
        sk = e.u('lo')
        e(f'v_lshlrev_b32 v{T+2}, 4, v1', 's_mov_b32 exec_hi, 0', f'buffer_store_dword v{T+8}, v{T+2}, s[16:19], s4 offen', 's_mov_b32 exec_hi, -1', 's_nop 1')
    (e('s_cmp_ge_u32 s77, 8', 's_cselect_b32 s77, 999, s77') if PROF else None)
    prof_end(e, 's77', 2, 4) if PK == '2' else None
    tl_end(e, 1)
    e('s_endpgm')

def gemm2(e):
    SL = 20480; NSL = 3; RS = 384
    ACC = 128; X = 8; W = 24
    e(f's_sub_u32 s4, s2, {NATT}')
    e('s_and_b32 s5, s4, 7', 's_lshr_b32 s6, s4, 3', 's_and_b32 s7, s6, 1', 's_lshl_b32 s5, s5, 1', 's_add_u32 s25, s5, s7', 's_lshr_b32 s6, s6, 1')
    e('s_mul_i32 s7, s6, 43', 's_lshr_b32 s26, s7, 7', 's_mul_i32 s7, s26, 3', 's_sub_u32 s27, s6, s7')
    e('s_mul_i32 s28, s26, 29', 's_cmp_eq_u32 s26, 4', 's_cselect_b32 s29, 28, 29')
    srd(e, 12, 48, 4608*1152)
    e('s_lshl_b32 s4, s25, 2', 's_add_u32 s4, s4, s24', f's_mul_i32 s4, s4, {288*1024}', 's_lshl_b32 s5, s28, 11', 's_add_u32 s33, s4, s5', f's_add_u32 s33, s33, {HF}')
    e(f's_mul_i32 s34, s28, {32*1152}', 's_mul_i32 s4, s27, 384', 's_add_u32 s34, s34, s4')
    for i in range(3):
        e(f's_add_u32 s4, s24, {4*i}', 's_lshl_b32 s4, s4, 6', 'v_add_u32 v64, s4, v1', 's_mov_b32 s5, 2731', 'v_mul_lo_u32 v65, v64, s5', 'v_lshrrev_b32 v65, 16, v65')
        e('v_mul_u32_u24 v66, 24, v65', 'v_sub_u32 v66, v64, v66', 'v_lshlrev_b32 v67, 1, v65', 'v_and_b32 v67, 4, v67', 'v_xor_b32 v66, v66, v67', 'v_lshlrev_b32 v66, 4, v66')
        e(f'v_mul_u32_u24 v65, 1152, v65', f'v_add_u32 v{4+i}, v65, v66') if i < 2 else e('v_mul_u32_u24 v65, 1152, v65', 'v_add_u32 v48, v65, v66')
    VW = [4, 5, 48]
    e('s_lshl_b32 s35, s24, 11', 's_lshl_b32 s36, s24, 10', 's_add_u32 s36, s36, 8192', 's_mov_b32 s30, 0', 's_mov_b32 s38, 0')
    e('s_waitcnt lgkmcnt(0)'); fix_srd(e, 12)
    def dma():
        L = [['s_add_u32 m0, s30, s35', 's_nop 0', 'buffer_load_dwordx4 v3, s[16:19], s33 offen lds'], ['buffer_load_dwordx4 v3, s[16:19], s33 offen offset:1024 lds']]
        for i in range(3): L.append(['s_add_u32 m0, s30, s36' if i == 0 else 's_add_u32 m0, m0, 4096', 's_nop 0', f'buffer_load_dwordx4 v{VW[i]}, s[12:15], s34 offen lds'])
        L[-1] += ['s_add_u32 s33, s33, 2048', f's_add_u32 s34, s34, {32*1152}', 's_add_u32 s38, s38, 1', 's_cmp_ge_u32 s38, s29', 's_cselect_b32 s33, 0x40000000, s33', 's_cselect_b32 s34, 0x40000000, s34',
                  f's_add_u32 s30, s30, {SL}', f's_cmp_eq_u32 s30, {SL*NSL}', 's_cselect_b32 s30, 0, s30']
        return L
    for st in range(2):
        for d in dma(): em(e, d)
    e('s_and_b32 s39, s24, 1', 's_lshr_b32 s41, s24, 1')
    e('v_and_b32 v64, 15, v1', 'v_lshrrev_b32 v65, 5, v1', 'v_lshrrev_b32 v66, 2, v64', 'v_lshl_add_u32 v66, v65, 3, v66')
    e('v_bfe_u32 v67, v1, 4, 1', 'v_lshlrev_b32 v67, 5, v67', 'v_and_b32 v68, 3, v64', 'v_lshl_add_u32 v67, v68, 3, v67')
    e(f'v_mul_u32_u24 v66, {RS}, v66', 'v_add_u32 v66, v66, v67', 'v_bfe_u32 v67, v1, 3, 1', 'v_xor_b32 v67, s39, v67', 'v_lshl_add_u32 v66, v67, 6, v66', 'v_add_u32 v50, 8192, v66')
    e('s_lshl_b32 s4, s41, 12', 'v_add_u32 v51, s4, v3')
    for r in range(96): e(f'v_mov_b32 v{ACC+r}, 0')
    e('s_mov_b32 s40, 0', 's_mov_b32 s42, 0')
    prof_mark(e, 0)
    lp = 'g2_loop'; e.lab(lp)
    e('s_waitcnt vmcnt(5)', 's_barrier', 'v_add_u32 v52, s40, v50', 'v_add_u32 v53, s40, v51')
    R = []
    for s in range(2):
        for m in range(2): R.append(f'ds_read_b128 {vr(X+8*s+4*m,4)}, v53 offset:{2048*m+1024*s}')
        for t in range(3):
            for kk in range(2): R.append(f'ds_read_b64_tr_b16 {vr(W+12*s+4*t+2*kk,2)}, v52 offset:{(16*s+4*kk)*RS+128*t}')
    D = dma()
    for x in R[:8]: e(x)
    for d in D[:2]: em(e, d)
    for x in R[8:]: e(x)
    e('s_waitcnt lgkmcnt(8)')
    D = D[2:]
    for s in range(2):
        if s == 1: e('s_waitcnt lgkmcnt(0)')
        for t in range(3):
            for m in range(2):
                e(f'v_mfma_f32_32x32x16_bf16 {vr(ACC+16*(2*t+m),16)}, {vr(W+12*s+4*t,4)}, {vr(X+8*s+4*m,4)}, {vr(ACC+16*(2*t+m),16)}')
            if D: em(e, D.pop(0))
    e(f's_add_u32 s40, s40, {SL}', f's_cmp_eq_u32 s40, {SL*NSL}', 's_cselect_b32 s40, 0, s40', 's_add_u32 s42, s42, 1', 's_cmp_lt_u32 s42, s29', f's_cbranch_scc1 {lp}')
    prof_mark(e, 1)
    e('s_waitcnt vmcnt(0)', 's_nop 15', 's_nop 7')
    for t in range(3):
        for m in range(2):
            A = ACC+16*(2*t+m); P = 64+8*((2*t+m) % 4)
            for x in range(8): e(f'v_cvt_pk_bf16_f32 v{P+x}, v{A+2*x}, v{A+2*x+1}')
            e('s_lshl_b32 s4, s26, 6', 's_lshl_b32 s5, s25, 2', 's_add_u32 s4, s4, s5', 's_lshl_b32 s5, s41, 1', 's_add_u32 s4, s4, s5', f's_add_u32 s4, s4, {m}', 's_mul_i32 s4, s4, 18')
            e('s_mul_i32 s5, s27, 6', 's_add_u32 s4, s4, s5', 's_add_u32 s4, s4, s39', f's_add_u32 s4, s4, {2*t}', 's_lshl_b32 s4, s4, 11', f's_add_u32 s4, s4, {PART}')
            e(f'buffer_store_dwordx4 {vr(P,4)}, v3, s[16:19], s4 offen {os.environ.get("PST","sc0 sc1")}', f'buffer_store_dwordx4 {vr(P+4,4)}, v3, s[16:19], s4 offen offset:1024 {os.environ.get("PST","sc0 sc1")}', 's_nop 1')
    if PROF: e('s_sub_u32 s77, s77, 24', 's_cmp_lt_u32 s77, 8', 's_cselect_b32 s77, 999, s77')
    prof_end(e, 's77', 2, 4) if PK == '2' else None
    tl_end(e, 1)
    e('s_endpgm')

def prep(e):
    e(f's_sub_u32 s4, s2, {NATT+NG2}', 's_lshl_b32 s4, s4, 2', 's_add_u32 s27, s4, s24')
    srd(e, 12, 16, 576*1152)
    e('v_and_b32 v64, 31, v1', 'v_lshlrev_b32 v64, 1, v64', 'v_lshrrev_b32 v65, 5, v1')
    e('s_cmp_ge_u32 s27, 32', f's_cselect_b32 s5, {72*1152}, {8*1152}', 'v_mul_lo_u32 v66, s5, v65', 'v_add_u32 v66, v66, v64')
    e(f's_mul_i32 s28, s27, {18*1152}', 's_sub_u32 s29, s27, 32', f's_mul_i32 s29, s29, {144*1152}', f's_add_u32 s29, s29, {16*1152}')
    for j in range(8):
        e(f's_add_u32 s4, s28, {j*1152}', f's_add_u32 s5, s29, {(18*(j>>1)+(j&1))*1152}', 's_cmp_ge_u32 s27, 32', f's_cselect_b32 s{48+j}, s5, s4')
    e('s_waitcnt lgkmcnt(0)'); fix_srd(e, 12)
    e('s_lshl_b32 s4, s27, 10', f's_add_u32 s4, s4, {WOF}')
    for bt in range(3):
        for i in range(6):
            for j in range(8): e(f'buffer_load_ushort v{120+8*i+j}, v66, s[12:15], s{48+j} offen offset:{64*(6*bt+i)}')
        e('s_waitcnt vmcnt(0)')
        for i in range(6):
            for x in range(4): e(f'v_lshl_or_b32 v{80+4*i+x}, v{121+8*i+2*x}, 16, v{120+8*i+2*x}')
        for i in range(6):
            e(f'buffer_store_dwordx4 {vr(80+4*i,4)}, v3, s[16:19], s4 offen', f's_add_u32 s4, s4, {36*1024}')
        e('s_nop 1')
    tl_end(e, 1)
    e('s_endpgm')

def k2(e):
    header(e, 'k2_kernel')
    e(f's_cmp_ge_u32 s2, {NATT+NG2+NPREP}', 's_cbranch_scc1 k2_end')
    e('v_lshrrev_b32 v2, 6, v0', 'v_and_b32 v1, 63, v0', 's_nop 0', 'v_readfirstlane_b32 s24, v2', 'v_lshlrev_b32 v3, 4, v1')
    prof_start(e); tl_start(e)
    if PROF: e('s_lshr_b32 s77, s2, 3', 's_and_b32 s76, s2, 7', 's_cmp_lg_u32 s76, 0', 's_cselect_b32 s77, 999, s77')
    srd(e, 16, 88, WSEND)
    e('s_waitcnt lgkmcnt(0)'); fix_srd(e, 16)
    e(f's_cmp_ge_u32 s2, {NATT+NG2}', 's_cbranch_scc1 k2_prep', f's_cmp_ge_u32 s2, {NATT}', 's_cbranch_scc1 k2_g2')
    if os.environ.get('NOATT'): e('s_endpgm')
    e(f's_setprio {os.environ.get("APRIO", "3")}')
    attn(e)
    e.lab('k2_g2')
    if os.environ.get('NOG2'): e('s_endpgm')
    gemm2(e)
    e.lab('k2_prep'); prep(e)
    e.lab('k2_end'); e('s_endpgm')
```

```python
from common import *
import os
NW3 = 192
LAUNCH = f'; @launch kernel=k3_kernel grid=({NW3},1,1) block=(384,1,1) lds=147456'
NV = 256
def k3(e):
    header(e, 'k3_kernel')
    e(f's_cmp_ge_u32 s2, {NW3}', 's_cbranch_scc1 k3_end')
    e('s_and_b32 s4, s2, 7', 's_lshr_b32 s5, s2, 3', 's_and_b32 s6, s5, 3', 's_lshl_b32 s4, s4, 2', 's_add_u32 s25, s4, s6', 's_lshr_b32 s26, s5, 2')
    e('v_lshrrev_b32 v2, 6, v0', 'v_and_b32 v1, 63, v0', 's_nop 0', 'v_readfirstlane_b32 s24, v2', 'v_lshlrev_b32 v3, 4, v1')
    tl_start(e)
    srd(e, 16, 88, WSEND); srd(e, 8, 72, 2048*576*2); srd(e, 12, 56, 1152)
    e('s_waitcnt lgkmcnt(0)')
    for d in (8, 12, 16): fix_srd(e, d)
    e('s_mul_i32 s27, s24, 6144', f's_mul_i32 s28, s25, {2*36*1024}', 's_add_u32 s28, s28, s27', f's_add_u32 s28, s28, {OF}')
    e(f's_mul_i32 s29, s26, {3*36*1024}', 's_add_u32 s29, s29, s27', f's_add_u32 s29, s29, {WOF}')
    e(f's_add_u32 s30, s28, {36*1024}', f's_add_u32 s31, s29, {36*1024}', f's_add_u32 s32, s29, {72*1024}')
    FR = 40; ACC = 160
    SB = (28, 30, 29, 31, 32)
    for i in range(6):
        if i == 4:
            for sb in SB: e(f's_add_u32 s{sb}, s{sb}, 4096')
        for q, sb in enumerate(SB):
            e(f'buffer_load_dwordx4 {vr(FR+20*i+4*q,4)}, v3, s[16:19], s{sb} offen offset:{1024*(i%4)}')
    e('s_cmp_ge_u32 s24, 3', 's_cselect_b32 s33, 1, 0', 's_mul_i32 s34, s33, 3', 's_sub_u32 s34, s24, s34', 's_lshl_b32 s35, s25, 1', 's_add_u32 s35, s35, s33', 's_mul_i32 s36, s26, 3', 's_add_u32 s36, s36, s34')
    e('s_mul_i32 s37, s35, 18', 's_add_u32 s37, s37, s36', 's_lshl_b32 s37, s37, 11', f's_add_u32 s37, s37, {PART}')
    e('v_and_b32 v4, 31, v1', 'v_lshlrev_b32 v4, 2, v4', 's_lshl_b32 s38, s35, 7', f's_add_u32 s38, s38, {GT}')
    e('v_lshrrev_b32 v5, 5, v1', 'v_lshlrev_b32 v5, 3, v5', 's_lshl_b32 s39, s36, 6')
    def mm(i):
        F = FR+20*i
        for m in range(2):
            for n in range(3):
                A = ACC+16*(3*m+n)
                e(f'v_mfma_f32_32x32x16_bf16 {vr(A,16)}, {vr(F+8+4*n,4)}, {vr(F+4*m,4)}, {vr(A,16)}')
    if not os.environ.get('K3NEW'):
        for r in range(96): e(f'v_mov_b32 v{ACC+r}, 0')
        e('s_nop 1')
        for i in range(3):
            e(f's_waitcnt vmcnt({5*(5-i)})'); mm(i)
        e('s_nop 7')
        for sp in range(NSPLIT):
            e(f'buffer_load_dwordx4 {vr(40+8*sp,4)}, v3, s[16:19], s37 offen', f'buffer_load_dwordx4 {vr(44+8*sp,4)}, v3, s[16:19], s37 offen offset:1024')
            if sp < NSPLIT-1: e(f's_add_u32 s37, s37, {64*18*2048}')
        for g in range(4): e(f'buffer_load_dwordx2 v[{16+2*g}:{17+2*g}], v5, s[12:15], s39 offen offset:{16*g}')
        e('buffer_load_dword v6, v4, s[16:19], s38 offen')
        for i in range(3, 6):
            e(f's_waitcnt vmcnt({5*(5-i)+15})'); mm(i)
    else:
        e('s_mul_i32 s41, s24, 24576')
        for sp in range(NSPLIT):
            e(f's_add_u32 m0, s41, {2048*sp}', 's_nop 0', f'buffer_load_dwordx4 v3, s[16:19], s37 offen lds', f'buffer_load_dwordx4 v3, s[16:19], s37 offen offset:1024 lds')
            if sp < NSPLIT-1: e(f's_add_u32 s37, s37, {64*18*2048}')
        for g in range(4): e(f'buffer_load_dwordx2 v[{16+2*g}:{17+2*g}], v5, s[12:15], s39 offen offset:{16*g}')
        e('buffer_load_dword v6, v4, s[16:19], s38 offen')
        for r in range(96): e(f'v_mov_b32 v{ACC+r}, 0')
        e('s_nop 1')
        for i in range(6):
            e(f's_waitcnt vmcnt({5*(5-i)+15})'); mm(i)
        e('v_add_u32 v7, s41, v3', 's_waitcnt vmcnt(0)')
        for sp in range(NSPLIT):
            for h in range(2): e(f'ds_read_b128 {vr(40+8*sp+4*h,4)}, v7 offset:{2048*sp+1024*h}')
        e('s_waitcnt lgkmcnt(0)', 's_barrier')
    e('s_nop 15', 's_nop 7')
    e(f's_mul_i32 s40, s24, 4096', 'v_add_u32 v7, s40, v3')
    for t in range(6):
        if t == 2 or t == 4: e(f'v_add_u32 v7, {2*24576}, v7')
        for g in range(4): e(f'ds_write_b128 v7, {vr(ACC+16*t+4*g,4)} offset:{24576*(t%2)+1024*g}')
    e('s_waitcnt lgkmcnt(0)', 's_barrier')
    e('s_mul_i32 s40, s24, 24576', 'v_add_u32 v7, s40, v3')
    for w in range(6):
        for g in range(4): e(f'ds_read_b128 {vr(160+16*w+4*g,4)}, v7 offset:{4096*w+1024*g}')
    e('s_waitcnt vmcnt(0)')
    R = 100
    for half in range(2):
        for x in range(4):
            i = 8*half+2*x
            g, j = i//4, i % 4
            e(f'v_lshlrev_b32 v{R+i}, 16, v{16+2*g+j//2}', f'v_and_b32 v{R+i+1}, 0xffff0000, v{16+2*g+j//2}')
            for sp in range(NSPLIT):
                r = 40+8*sp+4*half+x
                e(f'v_lshlrev_b32 v8, 16, v{r}', f'v_and_b32 v9, 0xffff0000, v{r}', f'v_pk_add_f32 v[{R+i}:{R+i+1}], v[{R+i}:{R+i+1}], v[8:9]')
    e('v_sub_f32 v10, 1.0, v6', 's_waitcnt lgkmcnt(0)')
    for w in range(1, 6):
        for i in range(0, 16, 2): e(f'v_pk_add_f32 v[{160+i}:{161+i}], v[{160+i}:{161+i}], v[{160+16*w+i}:{161+16*w+i}]')
    for i in range(16): e(f'v_mul_f32 v{R+i}, v10, v{R+i}')
    for i in range(16): e(f'v_fma_f32 v{160+i}, v6, v{160+i}, v{R+i}')
    pack_swap(e, 160, 120)
    e('s_nop 1')
    for x in range(4): e(f'v_permlane16_swap_b32 v{120+x}, v{124+x}')
    e('v_and_b32 v4, 15, v1', 'v_mul_u32_u24 v4, 1152, v4', 'v_lshrrev_b32 v5, 5, v1', 'v_lshl_add_u32 v4, v5, 4, v4', 'v_bfe_u32 v5, v1, 4, 1', 'v_lshl_add_u32 v4, v5, 5, v4')
    e(f's_mul_i32 s38, s35, {32*1152}', 's_lshl_b32 s39, s36, 6', 's_add_u32 s38, s38, s39', f's_add_u32 s39, s38, {16*1152}', 's_nop 1')
    e('buffer_store_dwordx4 v[120:123], v4, s[8:11], s38 offen', 'buffer_store_dwordx4 v[124:127], v4, s[8:11], s39 offen')
    tl_end(e, 2)
    e.lab('k3_end'); e('s_endpgm')
```

```python
from common import *
QSC = '0x3eae1b5d'
import struct
def fbits(x): return '0x%08x' % struct.unpack('<I', struct.pack('<f', x))[0]
QSC = fbits(18**-0.5 * 1.4426950408889634)
ACC = 128
SLOT = 30720; NS = 5; GOFF = SLOT*NS
VXO, VWO, VSO, VXR, VWR, VSP, VG, VL16 = 4, 6, 8, 10, 12, 13, 14, 15
LP = 16
SETA, SETB = 24, 48
def k1_role(e, role):
    tiles = {'ffn': ['ffn']*3, 'qkl': ['qk']*3, 'qkg': ['qk']*3, 'mix': ['qk', 'v', 'v'], 'vl': ['v']*3}[role]
    sp = {'qkl': 'qkl', 'qkg': 'gate', 'vl': 'vl'}.get(role)
    RS = 384; wstride = 9216 if role == 'ffn' else 3456
    spd = sp in ('qkl', 'vl')
    for i in range(2):
        e(f's_add_u32 s4, s24, {8*i}', 's_lshl_b32 s4, s4, 6', 'v_add_u32 v64, s4, v1')
        e('s_mov_b32 s5, 2731', 'v_mul_lo_u32 v65, v64, s5', 'v_lshrrev_b32 v65, 16, v65')
        e('v_mul_u32_u24 v66, 24, v65', 'v_sub_u32 v66, v64, v66')
        e('v_lshlrev_b32 v67, 1, v65', 'v_and_b32 v67, 4, v67', 'v_xor_b32 v66, v66, v67')
        if role == 'ffn':
            e('v_lshlrev_b32 v66, 4, v66', 'v_mul_u32_u24 v65, 9216, v65', 's_mul_i32 s4, s26, 384', f'v_add3_u32 v{VWO+i}, v65, v66, s4')
        else:
            e('v_lshrrev_b32 v67, 1, v66', 'v_mul_u32_u24 v67, 36, v67', 'v_and_b32 v66, 1, v66', 'v_lshl_add_u32 v66, v66, 4, v67')
            e('v_mul_u32_u24 v65, 3456, v65', 's_mul_i32 s4, s31, 72', f'v_add3_u32 v{VWO+i}, v65, v66, s4')
    if spd:
        e('s_lshl_b32 s4, s24, 2', 'v_lshrrev_b32 v64, 4, v1', 'v_add_u32 v64, s4, v64', 'v_mul_u32_u24 v64, 3456, v64')
        e('v_and_b32 v65, 15, v1', 'v_mul_u32_u24 v65, 36, v65', 's_mul_i32 s4, s36, 576', 's_add_u32 s4, s4, 32', f'v_add3_u32 v{VSO}, v64, v65, s4')
    def dma_list():
        L = []
        for i in range(2): L.append([f's_add_u32 m0, s30, s33' if i == 0 else f's_add_u32 m0, m0, 1024', 's_nop 0', f'buffer_load_dwordx4 v{VXO+i}, s[8:11], s28 offen lds'])
        L.append(['s_add_u32 m0, s30, s34', 's_nop 0', f'buffer_load_dwordx4 v{VWO}, s[12:15], s29 offen lds'])
        sk = e.u('w2')
        L.append(['s_cmp_ge_u32 s24, 4', f's_cbranch_scc1 {sk}', 's_add_u32 m0, m0, 8192', 's_nop 0', f'buffer_load_dwordx4 v{VWO+1}, s[12:15], s29 offen lds', ('lab', sk)])
        if spd: L.append(['s_add_u32 m0, s30, s37', 's_nop 0', f'buffer_load_dword v{VSO}, s[12:15], s29 offen lds'])
        L[-1] = L[-1] + ['s_add_u32 s28, s28, 64', f's_add_u32 s29, s29, {32*wstride}', 's_add_u32 s38, s38, 1', 's_cmp_ge_u32 s38, 18', 's_cselect_b32 s28, 0x40000000, s28', 's_cselect_b32 s29, 0x40000000, s29',
                         f's_add_u32 s30, s30, {SLOT}', f's_cmp_eq_u32 s30, {SLOT*NS}', 's_cselect_b32 s30, 0, s30']
        return L
    def em(d):
        for x in d:
            if isinstance(x, tuple): e.lab(x[1])
            else: e(x)
    PER = 4 if spd else 3
    e('s_lshl_b32 s33, s24, 11', 's_lshl_b32 s34, s24, 10', 's_add_u32 s34, s34, 16384', 's_lshl_b32 s37, s24, 8', f's_add_u32 s37, s37, {16384+12288}', 's_mov_b32 s28, 0', 's_mov_b32 s29, 0', 's_mov_b32 s30, 0', 's_mov_b32 s38, 0')
    if role == 'ffn':
        e('v_lshrrev_b32 v64, 5, v1', 'v_lshlrev_b32 v64, 3, v64', 's_mul_i32 s4, s26, 384', 's_lshl_b32 s5, s39, 6', 's_add_u32 s4, s4, s5', 'v_add_u32 v64, s4, v64')
        for t in range(3):
            for g in range(4): e(f'buffer_load_dwordx2 v[{72+8*t+2*g}:{73+8*t+2*g}], v64, s[20:23], 0 offen offset:{128*t+16*g}')
    if sp == 'gate':
        e('s_cmp_lg_u32 s24, 0', 's_cbranch_scc1 k1_nog', f's_mov_b32 m0, {GOFF}', 'v_lshlrev_b32 v64, 4, v1', 'buffer_load_dwordx4 v64, s[20:23], 0 offen lds',
          f's_mov_b32 m0, {GOFF+1024}', 'v_add_u32 v64, 1024, v64', 'buffer_load_dwordx4 v64, s[20:23], 0 offen lds')
        e.lab('k1_nog')
        e('v_lshrrev_b32 v64, 5, v1', 'v_lshlrev_b32 v64, 4, v64', f'v_add_u32 v{VG}, {GOFF}, v64')
    for st in range(NS-1):
        for d in dma_list(): em(d)
    NPF = 0
    if role != 'ffn' and not os.environ.get('NOPF'):
        NPF = 1
        e('s_lshr_b32 s4, s2, 3', 's_mul_i32 s4, s4, 486', 'v_add_u32 v64, s4, v0', 'v_lshlrev_b32 v64, 7, v64', 'v_mov_b32 v65, 0x7f000000', 'v_cmp_gt_u32 vcc, 486, v0')
        e('v_cndmask_b32 v64, v65, v64, vcc', 'buffer_load_dword v97, v64, s[12:15], 0 offen')
    if role == 'ffn' and os.environ.get('PF2', '0') == '1':
        NPF = 1
        e('s_lshl_b32 s4, s26, 3', 's_add_u32 s4, s4, s25', 's_mul_i32 s4, s4, 27648', 'v_lshlrev_b32 v64, 6, v0', 'buffer_load_dword v97, v64, s[44:47], s4 offen')
    PFM = os.environ.get('PFM', '')
    if role == 'ffn' and 'w' in PFM:
        NPF += 1
        e('s_lshr_b32 s4, s2, 3', 's_mul_i32 s4, s4, 432', 'v_add_u32 v64, s4, v0', 's_mov_b32 s5, 43691', 'v_mul_lo_u32 v65, v64, s5', 'v_lshrrev_b32 v65, 20, v65')
        e('v_mul_u32_u24 v66, 24, v65', 'v_sub_u32 v66, v64, v66', 'v_mul_u32_u24 v65, 9216, v65', 'v_lshl_add_u32 v64, v66, 7, v65')
        e('s_and_b32 s4, s2, 7', 's_lshr_b32 s4, s4, 1', 's_mul_i32 s4, s4, 3072', 'v_add_u32 v64, s4, v64', 'v_mov_b32 v65, 0x7f000000', 'v_cmp_gt_u32 vcc, 432, v0')
        e('v_cndmask_b32 v64, v65, v64, vcc', 'buffer_load_dword v97, v64, s[12:15], 0 offen')
    if 'x' in PFM:
        NPF += 1
        e('s_lshr_b32 s4, s2, 3', 's_mul_i32 s4, s4, 288', 'v_add_u32 v64, s4, v0', 'v_lshlrev_b32 v64, 7, v64', 's_and_b32 s4, s2, 1', 's_mul_i32 s4, s4, 1179648', 'v_add_u32 v64, s4, v64')
        e('v_mov_b32 v65, 0x7f000000', 'v_cmp_gt_u32 vcc, 288, v0', 's_nop 0', 'v_cndmask_b32 v64, v65, v64, vcc', 'buffer_load_dword v98, v64, s[8:11], 0 offen')
    e('v_and_b32 v64, 15, v1', 'v_lshrrev_b32 v65, 5, v1', 'v_lshrrev_b32 v66, 2, v64', 'v_lshl_add_u32 v66, v65, 3, v66')
    e('v_bfe_u32 v67, v1, 4, 1', 'v_lshlrev_b32 v67, 5, v67', 'v_and_b32 v68, 3, v64', 'v_lshl_add_u32 v67, v68, 3, v67')
    e('v_mul_u32_u24 v68, 64, v66', f'v_add_u32 v{LP+3}, v68, v67', f'v_add_u32 v{LP+3}, {16384+12288}, v{LP+3}')
    e(f'v_mul_u32_u24 v66, {RS}, v66', 'v_add_u32 v66, v66, v67', 'v_bfe_u32 v67, v1, 3, 1', 'v_xor_b32 v67, s39, v67', 'v_lshl_add_u32 v66, v67, 6, v66', f'v_add_u32 v{LP+2}, 16384, v66')
    for s in range(2):
        e('v_and_b32 v64, 31, v1', 'v_bfe_u32 v65, v1, 2, 2', 'v_lshrrev_b32 v66, 5, v1', f'v_add_u32 v66, {2*s}, v66', 'v_xor_b32 v65, v65, v66')
        e('v_lshlrev_b32 v64, 6, v64', 'v_lshl_add_u32 v64, v65, 4, v64', 's_lshr_b32 s4, s24, 1', 's_lshl_b32 s4, s4, 12', f'v_add_u32 v{LP+s}, s4, v64')
    nacc = 6 + (1 if sp else 0)
    if role != 'ffn':
        for r in range(16*nacc): e(f'v_mov_b32 v{ACC+r}, 0')
    e(f's_waitcnt vmcnt({PER*(NS-2)+NPF})')
    if role == 'ffn':
        for t in range(3):
            for g in range(4):
                for x in range(2):
                    r = 72+8*t+2*g+x
                    for m in range(2): e(f'v_lshlrev_b32 v{ACC+16*(2*t+m)+4*g+2*x}, 16, v{r}', f'v_and_b32 v{ACC+16*(2*t+m)+4*g+2*x+1}, 0xffff0000, v{r}')
    def addr():
        e(f'v_add_u32 v{VXR}, s40, v{LP}', f'v_add_u32 v{VXR+1}, s40, v{LP+1}', f'v_add_u32 v{VWR}, s40, v{LP+2}')
        if spd: e(f'v_add_u32 v{VSP}, s40, v{LP+3}')
    def reads(S, s):
        L = []
        for m in range(2): L.append(f'ds_read_b128 {vr(S+4*m,4)}, v{VXR+s} offset:{2048*m}')
        if not os.environ.get('NORD'):
            for t in range(3):
                for kk in range(2): L.append(f'ds_read_b64_tr_b16 {vr(S+8+4*t+2*kk,2)}, v{VWR} offset:{(16*s+4*kk)*RS+128*t}')
            if spd:
                for kk in range(2): L.append(f'ds_read_b64_tr_b16 {vr(S+20+2*kk,2)}, v{VSP} offset:{(16*s+4*kk)*64}')
            if sp == 'gate': L.append(f'ds_read_b128 {vr(S+20,4)}, v{VG} offset:{32*s}')
        return L
    def mfmas(S):
        L = []
        for t in range(3):
            for m in range(2):
                a, b = (S+4*m, S+8+4*t) if tiles[t] == 'v' else (S+8+4*t, S+4*m)
                L.append(f'v_mfma_f32_32x32x16_bf16 {vr(ACC+16*(2*t+m),16)}, {vr(a,4)}, {vr(b,4)}, {vr(ACC+16*(2*t+m),16)}')
        if sp:
            for wn in range(2):
                pass
        return L
    def special(S):
        if not sp: return
        l0, l1 = e.u('sp0'), e.u('sp1')
        e('s_cmp_eq_u32 s39, 0', f's_cbranch_scc1 {l0}')
        for wn in (1, 0):
            if wn == 0: e.lab(l0)
            a, b = (S+4*wn, S+20) if sp == 'vl' else (S+20, S+4*wn)
            e(f'v_mfma_f32_32x32x16_bf16 {vr(ACC+96,16)}, {vr(a,4)}, {vr(b,4)}, {vr(ACC+96,16)}')
            if wn == 1: e(f's_branch {l1}')
        e.lab(l1)
    def spm(S, wn):
        a, b = (S+4*wn, S+20) if sp == 'vl' else (S+20, S+4*wn)
        return f'v_mfma_f32_32x32x16_bf16 {vr(ACC+96,16)}, {vr(a,4)}, {vr(b,4)}, {vr(ACC+96,16)}'
    def half(S, R, D, wn=None):
        M = [] if os.environ.get('NOMFMA') else mfmas(S)
        if sp: M.insert(int(os.environ.get('SPOS', '6')), spm(S, wn))
        R = list(R); D = list(D)
        for x in R[:4]: e(x)
        R = R[4:]
        for i in range(7 if sp else 6):
            if M: e(M[i])
            for x in R[:2]: e(x)
            R = R[2:]
            if D: em(D.pop(0))
        for x in R: e(x)
        for d in D: em(d)
    e('s_barrier', 's_mov_b32 s40, 0')
    addr()
    for x in reads(SETA, 0): e(x)
    e('s_mov_b32 s27, 0')
    def loop(wn):
        lp = e.u('k1loop'); e.lab(lp)
        e('s_waitcnt lgkmcnt(0)')
        half(SETA, reads(SETB, 1), [] if os.environ.get('NODMA') else dma_list(), wn)
        e('s_waitcnt lgkmcnt(0)', f's_waitcnt vmcnt({PER*(NS-2)})', 's_barrier')
        e(f's_add_u32 s40, s40, {SLOT}', f's_cmp_eq_u32 s40, {SLOT*NS}', 's_cselect_b32 s40, 0, s40')
        addr()
        if sp == 'gate': e(f'v_add_u32 v{VG}, 64, v{VG}')
        half(SETB, reads(SETA, 0), [], wn)
        e('s_add_u32 s27, s27, 1', 's_cmp_lt_u32 s27, 18', f's_cbranch_scc1 {lp}')
    if sp:
        l0, l1 = e.u('lw0'), e.u('lw1')
        e('s_cmp_eq_u32 s39, 0', f's_cbranch_scc1 {l0}')
        loop(1); e(f's_branch {l1}'); e.lab(l0); loop(0); e.lab(l1)
    else: loop(None)
    e('s_waitcnt lgkmcnt(0)', 's_nop 15', 's_nop 7')
    prof_mark(e, 0)
    items = [(tiles[t], ACC+16*(2*t+m), t, m) for t in range(3) for m in range(2)]
    if sp: items.append((sp, ACC+96, 0, 0))
    for k, (ty, A, t, m) in enumerate(items):
        P = 64 + 8*(k % 4)
        if ty == 'ffn':
            for r in range(16): e(f'v_max_f32 v{96+r}, 0, v{A+r}')
            for r in range(0, 16, 2): e(f'v_pk_mul_f32 v[{A+r}:{A+r+1}], v[{96+r}:{97+r}], v[{96+r}:{97+r}]')
            pack_swap(e, A, P)
            e(f's_add_u32 s4, s41, {m}', f's_mul_i32 s4, s4, {288*1024}', f's_mul_i32 s5, s26, {12*1024}', 's_add_u32 s4, s4, s5', 's_lshl_b32 s5, s39, 11', 's_add_u32 s4, s4, s5', f's_add_u32 s4, s4, {HF+4*t*1024}')
            e(f'buffer_store_dwordx4 {vr(P,4)}, v{VL16}, s[16:19], s4 offen {os.environ.get("HST","sc0 sc1")}', f'buffer_store_dwordx4 {vr(P+4,4)}, v{VL16}, s[16:19], s4 offen offset:1024 {os.environ.get("HST","sc0 sc1")}')
        elif ty == 'qk':
            e(f's_add_u32 s5, s31, {2*t}', 's_add_u32 s5, s5, s39', 's_cmp_lt_u32 s5, 16', f's_cselect_b32 s6, {QSC}, 1.0')
            for r in range(16): e(f'v_mul_f32 v{A+r}, s6, v{A+r}')
            pack_swap(e, A, P)
            e(f's_add_u32 s4, s41, {m}', f's_cselect_b32 s7, 0, 0', 's_cmp_lt_u32 s5, 16', f's_cselect_b32 s6, 1024, {KVT}', 's_mul_i32 s4, s4, s6', f's_cselect_b32 s6, 65536, {KVH}', f's_cselect_b32 s7, {QF}, {KV-32*KVH}',
              's_mul_i32 s5, s5, s6', 's_lshl_b32 s5, s5, 1', 's_add_u32 s4, s4, s5', 's_add_u32 s4, s4, s7', 's_add_u32 s5, s4, s6')
            e(f'buffer_store_dwordx4 {vr(P,4)}, v{VL16}, s[16:19], s4 offen {os.environ.get("QST","sc0 sc1")}', f'buffer_store_dwordx4 {vr(P+4,4)}, v{VL16}, s[16:19], s5 offen {os.environ.get("QST","sc0 sc1")}')
        elif ty in ('v', 'vl'):
            for g in range(4):
                for x in range(2): e(f'v_cvt_pk_bf16_f32 v{P+2*g+x}, v{A+4*g+2*x}, v{A+4*g+2*x+1}')
            if ty == 'v':
                e('v_bfe_u32 v100, v1, 4, 1', f'v_mul_u32_u24 v100, {KVH}, v100', 'v_and_b32 v101, 47, v1', 'v_lshl_add_u32 v100, v101, 4, v100')
                e(f's_add_u32 s5, s31, {2*t}', 's_add_u32 s5, s5, s39', 's_sub_u32 s5, s5, 32', f's_mul_i32 s5, s5, {2*KVH}', f's_add_u32 s4, s41, {m}', f's_mul_i32 s4, s4, {KVT}')
            else:
                e('v_bfe_u32 v100, v1, 1, 4', f'v_mul_u32_u24 v100, {KVH}, v100', 'v_and_b32 v101, 33, v1', 'v_add_u32 v101, 16, v101', 'v_lshl_add_u32 v100, v101, 4, v100')
                e('s_sub_u32 s5, s36, 4', f's_mul_i32 s5, s5, {16*KVH}', f's_mul_i32 s4, s32, {KVT}')
            e('s_add_u32 s4, s4, s5', f's_add_u32 s4, s4, {KV+1024}')
            e(f'buffer_store_dwordx4 {vr(P,4)}, v100, s[16:19], s4 offen {os.environ.get("QST","sc0 sc1")}', f'buffer_store_dwordx4 {vr(P+4,4)}, v100, s[16:19], s4 offen offset:1024 {os.environ.get("QST","sc0 sc1")}')
            if ty == 'vl':
                e('v_bfe_u32 v102, v1, 1, 4', f'v_mul_u32_u24 v102, {KVH}, v102', 'v_and_b32 v101, 32, v1', 'v_add_u32 v101, 18, v101', 'v_lshl_add_u32 v102, v101, 4, v102')
                for x in range(4): e(f'v_mov_b32 v{104+x}, 0x3f803f80')
                e('buffer_store_dwordx4 v[104:107], v102, s[16:19], s4 offen', 'buffer_store_dwordx4 v[104:107], v102, s[16:19], s4 offen offset:1024')
        elif ty == 'qkl':
            e('s_cmp_lt_u32 s36, 2', f's_cselect_b32 s6, {QSC}, 1.0')
            for r in range(16): e(f'v_mul_f32 v{A+r}, s6, v{A+r}')
            for g in range(4):
                for x in range(2): e(f'v_cvt_pk_bf16_f32 v{P+2*g+x}, v{A+4*g+2*x}, v{A+4*g+2*x+1}')
            e('s_cmp_lt_u32 s36, 2', f's_cselect_b32 s7, 8192, {KVH}', f's_cselect_b32 s5, 128, {KVT}', f's_cselect_b32 s6, {Q2}, {KV-32*KVH+3072}', 's_mul_i32 s4, s32, s5', 's_add_u32 s4, s4, s6', 's_mul_i32 s5, s36, s7', 's_lshl_b32 s5, s5, 4', 's_add_u32 s4, s4, s5')
            e('v_lshrrev_b32 v100, 5, v1', 's_lshl_b32 s5, s7, 1', 'v_mul_lo_u32 v100, v100, s5', 'v_and_b32 v101, 31, v1', 'v_lshl_add_u32 v100, v101, 2, v100')
            for g in range(4):
                for x in range(2):
                    e(f's_mul_i32 s5, s7, {4*g+x}', 's_add_u32 s5, s5, s4', f'buffer_store_dword v{P+2*g+x}, v100, s[16:19], s5 offen')
        elif ty == 'gate':
            e(f'v_mul_f32 v100, 0xbfb8aa3b, v{A}', 'v_exp_f32 v100, v100', 's_nop 0', 'v_add_f32 v100, 1.0, v100', 'v_rcp_f32 v100, v100')
            e('v_and_b32 v101, 31, v1', 'v_lshlrev_b32 v101, 2, v101', 's_lshl_b32 s4, s32, 7', f's_add_u32 s4, s4, {GT}', 's_nop 0', 'buffer_store_dword v100, v101, s[16:19], s4 offen')
        e('s_nop 1')
    e('s_waitcnt vmcnt(0)') if PROF else None
    if PROF: e('s_lshl_b32 s77, s25, 6', 's_add_u32 s77, s77, s26', 's_lshr_b32 s77, s77, 0')
    e('s_mov_b32 s77, s2') if PROF else None
    if PROF: e('s_waitcnt lgkmcnt(0)', 's_lshl_b32 s76, s76, 24', 's_add_u32 s80, s80, s76', 's_sub_u32 s80, s80, s76', 's_sub_u32 s80, s80, s76')
    prof_end(e, 's77', 1, 2) if os.environ.get('PK','1')=='1' else None
    tl_end(e, 0)
    e('s_endpgm')

def k1(e):
    header(e, 'k1_kernel')
    e('s_cmp_ge_u32 s2, 256', 's_cbranch_scc1 k1_end')
    e('s_and_b32 s4, s2, 7', 's_lshr_b32 s5, s2, 3')
    e('s_and_b32 s6, s4, 1', 's_lshl_b32 s6, s6, 2', 's_and_b32 s7, s5, 3', 's_add_u32 s25, s6, s7')
    e('s_lshr_b32 s6, s4, 1', 's_lshl_b32 s6, s6, 3', 's_lshr_b32 s7, s5, 2', 's_add_u32 s26, s6, s7')
    if os.environ.get('SAME'): e('s_mov_b32 s25, 0', 's_and_b32 s26, s26, 1')
    if PROF: e('s_getreg_b32 s76, hwreg(HW_REG_XCC_ID)', 's_and_b32 s76, s76, 15')
    e('v_lshrrev_b32 v2, 6, v0', 'v_and_b32 v1, 63, v0', 's_nop 0', 'v_readfirstlane_b32 s24, v2', f'v_lshlrev_b32 v{VL16}, 4, v1')
    prof_start(e); tl_start(e)
    srd(e, 16, 88, WSEND); srd(e, 44, 48, 5308416)
    e('s_lshl_b32 s32, s25, 3', 's_add_u32 s32, s32, s24')
    e('s_cmp_ge_u32 s26, 24', 's_cbranch_scc1 k1_qkv')
    srd(e, 8, 0, 2359296); srd(e, 12, 32, 5308416); srd(e, 20, 40, 9216)
    e('s_branch k1_go')
    e.lab('k1_qkv')
    srd(e, 8, 0, 2359296); srd(e, 12, 8, 1990656); srd(e, 20, 64, 1152)
    e.lab('k1_go')
    e('s_and_b32 s39, s24, 1', 's_lshr_b32 s41, s24, 1', 's_lshl_b32 s41, s41, 1', 's_lshl_b32 s4, s25, 3', 's_add_u32 s41, s41, s4')
    for i in range(2):
        e('v_lshrrev_b32 v64, 2, v1', f'v_add_u32 v64, {16*i}, v64', 'v_bfe_u32 v65, v64, 2, 2', 'v_and_b32 v66, 3, v1', 'v_xor_b32 v65, v65, v66')
        e('s_lshl_b32 s4, s32, 5', 'v_add_u32 v64, s4, v64', 'v_mul_u32_u24 v64, 1152, v64', f'v_lshl_add_u32 v{VXO+i}, v65, 4, v64')
    e('s_waitcnt lgkmcnt(0)')
    for d in (8, 12, 16, 20, 44): fix_srd(e, d)
    e('s_sub_u32 s35, s26, 24', 's_mul_i32 s31, s35, 6')
    e('s_sub_u32 s4, s35, 2', 's_cmp_lt_u32 s35, 4', 's_cselect_b32 s36, s35, s4')
    e('s_cmp_lt_u32 s26, 24', 's_cbranch_scc1 k1_ffn', 's_cmp_lt_u32 s26, 28', 's_cbranch_scc1 k1_qkl', 's_cmp_eq_u32 s26, 28', 's_cbranch_scc1 k1_qkg', 's_cmp_eq_u32 s26, 29', 's_cbranch_scc1 k1_mix', 's_branch k1_vl')
    for r in ('ffn', 'qkl', 'qkg', 'mix', 'vl'):
        e.lab('k1_' + r); k1_role(e, r)
    e.lab('k1_end'); e('s_endpgm')
```
